```python
import torch

def _softmax(x, axis=-1):
    return torch.softmax(x, dim=axis)
def _gelu(x):
    return torch.nn.functional.gelu(x, approximate="tanh")
def _silu(x):
    return torch.nn.functional.silu(x)
def _sigmoid(x):
    return torch.sigmoid(x)
def _layernorm(x, axis=-1, eps=1e-5):
    m = x.mean(dim=axis, keepdim=True)
    v = x.var(dim=axis, keepdim=True, unbiased=False)
    return (x - m) / torch.sqrt(v + eps)
def _scatter_add(tgt, idx, src, axis=0):
    return tgt.clone().index_add_(axis, idx, src)
def _segment_sum(src, seg, n):
    out = torch.zeros((n,) + src.shape[1:], dtype=src.dtype)
    return out.index_add_(0, seg, src)
def _pad(x, pw):
    flat = tuple(v for pair in reversed(pw) for v in pair)
    return torch.nn.functional.pad(x, flat)

kernel_name = 'standalone__glu_gated_reglu__prompt'

def setup_inputs():

    _w = (lambda a: (lambda t: t.to(torch.bfloat16) if t.is_floating_point() else t)(torch.as_tensor(a)))
    B, S, D, F = 1, 2048, 640, 1536
    return {
        "x": _w((lambda *s: torch.randn(*s, dtype=torch.bfloat16) * 0.05)(B, S, D)),
        "W_gate": _w((lambda *s: torch.randn(*s, dtype=torch.bfloat16) * 0.05)(D, F) * (2.0 / D) ** 0.5),
        "W_up": _w((lambda *s: torch.randn(*s, dtype=torch.bfloat16) * 0.05)(D, F) * (2.0 / D) ** 0.5),
        "W_down": _w((lambda *s: torch.randn(*s, dtype=torch.bfloat16) * 0.05)(F, D) * (1.0 / F) ** 0.5),
    }

def reference(x, W_gate, W_up, W_down):
    gate = torch.einsum("bsd,df->bsf", x, W_gate)
    up = torch.einsum("bsd,df->bsf", x, W_up)
    gate = gate * (lambda x, dt: x.to(dt))(gate > 0, gate.dtype)
    h = gate * up
    return torch.einsum("bsf,fd->bsd", h, W_down)
```

```python
import sys

S, D, F = 2048, 640, 1536
X_BYTES = S * D * 2
W_BYTES = D * F * 2
H_BYTES = S * F * 2
KNAME = "standalone__glu_gated_reglu__prompt_kernel"

class E:
    def __init__(self):
        self.L = []
    def __call__(self, s):
        for ln in s.split("\n"):
            ln = ln.strip()
            if ln:
                self.L.append(ln if ln.endswith(":") else "    " + ln)
    def text(self):
        return "\n".join(self.L) + "\n"

def vr(a, n):
    return f"v[{a}:{a+n-1}]"

SRD_X, SRD_G, SRD_U, SRD_D, SRD_O, SRD_H = 20, 24, 28, 32, 36, 40
def srd(n): return f"s[{n}:{n+3}]"
S_WAVE = 44
S_M, S_F = 45, 46
S_R, S_C = 47, 48
S_SX, S_SW = 49, 50
S_MX, S_MW = 51, 52
S_CNT = 53
S_DX, S_DW = 54, 55
S_SLOT = 56
S_T0, S_T1, S_T2 = 57, 58, 59

XSLOT, WSLOT = 16384, 24576
LDS_X0, LDS_W0 = 0, 3 * XSLOT

V_DX, V_DG, V_DU = 8, 12, 15
V_RX, V_RW = 20, 24
V_A = 64
V_B = 88
V_ACC1 = 128

def header(e, launches):
    e.L.append("; ReGLU FFN: out = (relu(x Wg) * (x Wu)) Wd,  S=2048 D=640 F=1536, bf16")
    for l in launches:
        e.L.append(l)
    e.L.append('.amdgcn_target "amdgcn-amd-amdhsa--gfx950"')
    e.L.append(".text")

def kernel_begin(e, name):
    e.L.append(f".globl {name}")
    e.L.append(".p2align 8")
    e.L.append(f".type {name},@function")
    e.L.append(f"{name}:")

def descriptor(e, name, vgpr=256, accum=256, sgpr=96):
    e.L.append(f".amdhsa_kernel {name}")
    for l in (f".amdhsa_next_free_vgpr {vgpr}", f".amdhsa_next_free_sgpr {sgpr}", f".amdhsa_accum_offset {accum}",
              ".amdhsa_group_segment_fixed_size 0", ".amdhsa_kernarg_size 56", ".amdhsa_user_sgpr_count 2",
              ".amdhsa_user_sgpr_kernarg_segment_ptr 1", ".amdhsa_system_sgpr_workgroup_id_x 1"):
        e.L.append("  " + l)
    e.L.append(".end_amdhsa_kernel")

def wave_id(e):
    e(f"v_lshrrev_b32 v1, 6, v0\nv_and_b32 v0, 63, v0\nv_readfirstlane_b32 s{S_WAVE}, v1")

def p1_setup(e):
    e(f"""
    s_load_dwordx2 s[{SRD_X}:{SRD_X+1}], s[0:1], 0
    s_load_dwordx2 s[{SRD_G}:{SRD_G+1}], s[0:1], 8
    s_load_dwordx2 s[{SRD_U}:{SRD_U+1}], s[0:1], 16
    s_load_dwordx2 s[{SRD_H}:{SRD_H+1}], s[0:1], 48
    """)
    wave_id(e)
    e(f"""
    s_and_b32 s{S_T0}, s2, 4
    s_lshl_b32 s{S_T0}, s{S_T0}, 1
    s_lshr_b32 s{S_T1}, s2, 5
    s_add_u32 s{S_M}, s{S_T0}, s{S_T1}
    s_and_b32 s{S_T0}, s2, 3
    s_lshl_b32 s{S_T0}, s{S_T0}, 2
    s_bfe_u32 s{S_T1}, s2, 0x20003
    s_add_u32 s{S_F}, s{S_T0}, s{S_T1}
    """)
    e(f"""
    v_lshrrev_b32 v2, 3, v0
    s_lshl_b32 s{S_T0}, s{S_WAVE}, 5
    v_add_u32 v2, s{S_T0}, v2
    v_mul_u32_u24 v3, 1280, v2
    v_lshrrev_b32 v4, 4, v0
    v_and_b32 v5, 7, v0
    v_xor_b32 v4, v4, v5
    """)
    e(f"""
    v_lshl_add_u32 v{V_DX}, v4, 4, v3
    v_xor_b32 v4, 4, v4
    v_lshl_add_u32 v{V_DX+1}, v4, 4, v3
    v_add_u32 v{V_DX+1}, {10240-1024}, v{V_DX+1}
    v_add_u32 v{V_DX+2}, {2*(10240-1024)}, v{V_DX}
    v_add_u32 v{V_DX+3}, {2*(10240-1024)}, v{V_DX+1}
    """)
    e(f"s_mul_i32 s{S_T0}, s{S_WAVE}, {16*3072}")
    for j in range(3):
        e(f"""
        v_add_u32 v2, {64*j}, v0
        v_mul_u32_u24 v3, 5462, v2
        v_lshrrev_b32 v3, 16, v3
        v_mul_u32_u24 v4, 12, v3
        v_sub_u32 v4, v2, v4
        v_mul_u32_u24 v3, 3072, v3
        v_add_u32 v3, s{S_T0}, v3
        """)
        if j: e(f"v_subrev_u32 v3, {1024*j}, v3")
        e(f"""
        v_lshl_add_u32 v{V_DG+j}, v4, 4, v3
        v_xor_b32 v4, 2, v4
        v_lshl_add_u32 v{V_DU+j}, v4, 4, v3
        """)
    e("s_waitcnt lgkmcnt(0)")
    e(f"""
    s_mul_i32 s{S_T0}, s{S_M}, {128*1280}
    s_add_u32 s{SRD_X}, s{SRD_X}, s{S_T0}
    s_addc_u32 s{SRD_X+1}, s{SRD_X+1}, 0
    s_mov_b32 s{SRD_X+2}, {128*1280}
    s_mov_b32 s{SRD_X+3}, 0x20000
    s_mul_i32 s{S_T0}, s{S_F}, 192
    s_add_u32 s{SRD_G}, s{SRD_G}, s{S_T0}
    s_addc_u32 s{SRD_G+1}, s{SRD_G+1}, 0
    s_sub_u32 s{SRD_G+2}, {W_BYTES}, s{S_T0}
    s_mov_b32 s{SRD_G+3}, 0x20000
    s_add_u32 s{SRD_U}, s{SRD_U}, s{S_T0}
    s_addc_u32 s{SRD_U+1}, s{SRD_U+1}, 0
    s_mov_b32 s{SRD_U+2}, s{SRD_G+2}
    s_mov_b32 s{SRD_U+3}, 0x20000
    s_mov_b32 s{SRD_H+2}, {H_BYTES}
    s_mov_b32 s{SRD_H+3}, 0x20000
    s_lshl_b32 s{S_MX}, s{S_WAVE}, 12
    s_mul_i32 s{S_MW}, s{S_WAVE}, 3072
    s_add_u32 s{S_MW}, s{S_MW}, {LDS_W0}
    s_mov_b32 s{S_SX}, 0
    s_mov_b32 s{S_SW}, 0
    """)

def p1_dma_list():
    ops = []
    for j in range(4):
        pre = [f"s_mov_b32 m0, s{S_MX}", "s_nop 0"] if j == 0 else []
        ops.append(pre + [f"buffer_load_dwordx4 v{V_DX+j}, {srd(SRD_X)}, s{S_SX} offen offset:{1024*j} lds"])
    for j in range(3):
        pre = [f"s_mov_b32 m0, s{S_MW}", "s_nop 0"] if j == 0 else []
        ops.append(pre + [f"buffer_load_dwordx4 v{V_DG+j}, {srd(SRD_G)}, s{S_SW} offen offset:{1024*j} lds"])
    for j in range(3):
        pre = [f"s_add_u32 m0, s{S_MW}, 12288", "s_nop 0"] if j == 0 else []
        ops.append(pre + [f"buffer_load_dwordx4 v{V_DU+j}, {srd(SRD_U)}, s{S_SW} offen offset:{1024*j} lds"])
    return ops

def p1_dma_advance(e):
    e(f"""
    s_add_u32 s{S_SX}, s{S_SX}, 128
    s_add_u32 s{S_SW}, s{S_SW}, {64*3072}
    s_add_u32 s{S_MX}, s{S_MX}, {XSLOT}
    s_add_u32 s{S_MW}, s{S_MW}, {WSLOT}
    s_cmp_ge_u32 s{S_MX}, {3*XSLOT}
    s_cselect_b32 s{S_T0}, {3*XSLOT}, 0
    s_cselect_b32 s{S_T1}, {3*WSLOT}, 0
    s_sub_u32 s{S_MX}, s{S_MX}, s{S_T0}
    s_sub_u32 s{S_MW}, s{S_MW}, s{S_T1}
    """)

def p1_read_setup(e):
    e(f"""
    v_and_b32 v2, 31, v0
    s_lshr_b32 s{S_T0}, s{S_WAVE}, 1
    s_lshl_b32 s{S_T0}, s{S_T0}, 13
    v_lshlrev_b32 v3, 7, v2
    v_add_u32 v3, s{S_T0}, v3
    v_bfe_u32 v4, v0, 1, 3
    v_lshrrev_b32 v5, 5, v0
    v_xor_b32 v4, v4, v5
    """)
    for s in range(4):
        if s: e(f"v_xor_b32 v5, {2*s}, v4")
        e(f"v_lshl_add_u32 v{V_RX+s}, v{5 if s else 4}, 4, v3")
    e(f"""
    v_bfe_u32 v2, v0, 4, 1
    v_lshrrev_b32 v3, 5, v0
    v_lshlrev_b32 v3, 3, v3
    v_bfe_u32 v4, v0, 2, 2
    v_add_u32 v3, v3, v4
    v_mul_u32_u24 v3, 192, v3
    v_mul_u32_u24 v4, 12288, v2
    v_add_u32 v3, v3, v4
    v_and_b32 v4, 3, v0
    v_lshl_add_u32 v3, v4, 3, v3
    v_add_u32 v3, {LDS_W0}, v3
    v_lshlrev_b32 v2, 5, v2
    s_and_b32 s{S_T0}, s{S_WAVE}, 1
    s_mul_i32 s{S_T0}, s{S_T0}, 96
    """)
    for a in range(3):
        e(f"""
        s_add_u32 s{S_T1}, s{S_T0}, {32*a}
        v_xor_b32 v4, s{S_T1}, v2
        v_add_u32 v{V_RW+a}, v3, v4
        """)

def p1_reads(step):
    buf = step & 1
    def rb(bt): return f"ds_read_b128 {vr(V_B + buf*8 + bt*4, 4)}, v{V_RX+step} offset:{bt*4096}"
    def ra(a, half): return f"ds_read_b64_tr_b16 {vr(V_A + buf*12 + a*4 + half*2, 2)}, v{V_RW+a} offset:{(step*16 + half*4)*192}"
    return [rb(0), ra(0,0), ra(0,1), rb(1), ra(1,0), ra(1,1), ra(2,0), ra(2,1)]

def p1_mfma(step, i):
    buf = step & 1
    a, bt = i >> 1, i & 1
    acc = vr(V_ACC1 + 16*i, 16)
    return f"v_mfma_f32_32x32x16_bf16 {acc}, {vr(V_A + buf*12 + a*4, 4)}, {vr(V_B + buf*8 + bt*4, 4)}, {acc}"

def p1_rot_addr():
    L = [f"s_add_u32 s{S_SLOT}, s{S_SLOT}, 1",
         f"s_cmp_eq_u32 s{S_SLOT}, 3",
         f"s_cselect_b32 s{S_DX}, {-2*XSLOT}, {XSLOT}" if False else None]
    L = [f"s_add_u32 s{S_SLOT}, s{S_SLOT}, 1",
         f"s_cmp_eq_u32 s{S_SLOT}, 3",
         f"s_cselect_b32 s{S_SLOT}, 0, s{S_SLOT}",
         f"s_cselect_b32 s{S_DX}, s{S_CM2X}, s{S_CX}",
         f"s_cselect_b32 s{S_DW}, s{S_CM2W}, s{S_CW}"]
    V = [f"v_add_u32 v{V_RX+s}, s{S_DX}, v{V_RX+s}" for s in range(4)] + \
        [f"v_add_u32 v{V_RW+a}, s{S_DW}, v{V_RW+a}" for a in range(3)]
    return L, V
S_CX, S_CM2X, S_CW, S_CM2W = 60, 61, 62, 63

WAITS = {0: 5, 1: 6, 2: 6, 4: 8}

def p1_step(e, step, nxt_reads, extra, first=0, last=5, waits=None):
    waits = WAITS if waits is None else waits
    for i in range(first, last + 1):
        if i in waits: e(f"s_waitcnt lgkmcnt({waits[i]})")
        e(p1_mfma(step, i))
        for r in nxt_reads[2*i:2*i+2]: e(r)
        for x in extra.get(i, []): e(x)

def p1_body(e, dma, entry_label=None, end_wait=None):
    ops = p1_dma_list() if dma else [[] for _ in range(10)]
    r0 = p1_reads(0)
    for r in r0[0:2]: e(r)
    for i in range(1, 6):
        e(p1_mfma(3, i))
        for r in r0[2*i:2*i+2]: e(r)
        if i == 4:
            for x in ops[0]: e(x)
        if i == 5:
            for x in ops[1]: e(x)
    if entry_label: e(f"{entry_label}:")
    p1_step(e, 0, p1_reads(1), {3: ops[2], 4: ops[3], 5: ops[4]})
    p1_step(e, 1, p1_reads(2), {3: ops[5], 4: ops[6], 5: ops[7]})
    sal, val = p1_rot_addr()
    adv = E()
    if dma: p1_dma_advance(adv)
    p1_step(e, 2, p1_reads(3), {0: sal, 3: ops[8], 4: ops[9] + val[:4], 5: val[4:] + [x.strip() for x in adv.L]})
    e("s_waitcnt lgkmcnt(5)")
    e(p1_mfma(3, 0))
    if end_wait is not None:
        e(end_wait)
        e("s_barrier")

V_HOFF = 2
def p1_epilogue(e, flags):
    e(f"""
    v_bfe_u32 v2, v0, 4, 1
    v_lshlrev_b32 v2, 10, v2
    v_lshrrev_b32 v3, 5, v0
    v_lshl_add_u32 v2, v3, 8, v2
    v_and_b32 v3, 15, v0
    v_lshl_add_u32 v{V_HOFF}, v3, 4, v2
    s_lshr_b32 s{S_T0}, s{S_WAVE}, 1
    s_lshl_b32 s{S_T1}, s{S_M}, 1
    s_add_u32 s{S_T0}, s{S_T0}, s{S_T1}
    s_mul_i32 s{S_T0}, s{S_T0}, 196608
    s_and_b32 s{S_T1}, s{S_WAVE}, 1
    s_mul_i32 s{S_T1}, s{S_T1}, 3
    s_mul_i32 s{S_T2}, s{S_F}, 6
    s_add_u32 s{S_T1}, s{S_T1}, s{S_T2}
    """)
    for a in range(3):
        e(f"""
        s_add_u32 s{S_T2}, s{S_T1}, {a}
        s_lshr_b32 s{64+a}, s{S_T2}, 1
        s_lshl_b32 s{64+a}, s{64+a}, 12
        s_and_b32 s{S_T2}, s{S_T2}, 1
        s_lshl_b32 s{S_T2}, s{S_T2}, 9
        s_add_u32 s{64+a}, s{64+a}, s{S_T2}
        s_add_u32 s{64+a}, s{64+a}, s{S_T0}
        """)
    e("s_waitcnt lgkmcnt(0)")
    def epi(i):
        c = V_ACC1 + 16*i
        L = [f"v_max_f32 v{c+j}, 0, v{c+j}" for j in range(8)]
        L += [f"v_pk_mul_f32 {vr(c+2*j,2)}, {vr(c+2*j,2)}, {vr(c+8+2*j,2)}" for j in range(4)]
        L += [f"v_cvt_pk_bf16_f32 v{c+8+j}, v{c+2*j}, v{c+2*j+1}" for j in range(4)]
        L += [f"buffer_store_dwordx4 {vr(c+8,4)}, v{V_HOFF}, {srd(SRD_H)}, s{64+(i>>1)} offen offset:{(i&1)*2048} {flags}"]
        return L
    for i in range(1, 6): e(p1_mfma(3, i))
    e("s_nop 7")
    for i in range(6):
        for x in epi(i): e(x)

def phase1(e, hflags):
    p1_setup(e)
    ops = p1_dma_list()
    for st in range(2):
        for op in ops:
            for x in op: e(x)
        p1_dma_advance(e)
    for op in ops[:2]:
        for x in op: e(x)
    p1_read_setup(e)
    e(f"""
    s_mov_b32 s{S_CX}, {XSLOT}
    s_mov_b32 s{S_CM2X}, {-2*XSLOT}
    s_mov_b32 s{S_CW}, {WSLOT}
    s_mov_b32 s{S_CM2W}, {-2*WSLOT}
    s_mov_b32 s{S_SLOT}, 0
    s_mov_b32 s{S_CNT}, 0
    """)
    for i in range(96): e(f"v_mov_b32 v{V_ACC1+i}, 0")
    e("s_waitcnt vmcnt(12)\ns_barrier")
    for r in p1_reads(0): e(r)
    e("s_branch L_p1_entry")
    e("L_p1_loop:")
    p1_body(e, True, "L_p1_entry", "s_waitcnt vmcnt(10) lgkmcnt(0)")
    e(f"s_add_u32 s{S_CNT}, s{S_CNT}, 1\ns_cmp_lt_u32 s{S_CNT}, 8\ns_cbranch_scc1 L_p1_loop")
    p1_body(e, False, None, "s_waitcnt vmcnt(0) lgkmcnt(0)")
    p1_body(e, False, None, None)
    p1_epilogue(e, hflags)

V2_DD = 8
V2_HL = 13
V2_RA = 14
V2_A = 16
V2_H = 64
V2_ACC = 160
S_HS, S_DS, S_MB = 49, 50, 51

def p2_setup(e):
    e(f"""
    s_load_dwordx2 s[{SRD_D}:{SRD_D+1}], s[0:1], 24
    s_load_dwordx2 s[{SRD_O}:{SRD_O+1}], s[0:1], 32
    s_load_dwordx2 s[{SRD_H}:{SRD_H+1}], s[0:1], 48
    """)
    wave_id(e)
    e(f"""
    s_and_b32 s{S_T0}, s2, 7
    s_lshl_b32 s{S_T0}, s{S_T0}, 2
    s_lshr_b32 s{S_T1}, s2, 6
    s_add_u32 s{S_R}, s{S_T0}, s{S_T1}
    s_bfe_u32 s{S_C}, s2, 0x30003
    """)
    for j in range(5):
        e(f"""
        v_add_u32 v2, {64*j}, v0
        v_mul_u32_u24 v3, 6554, v2
        v_lshrrev_b32 v3, 16, v3
        v_mul_u32_u24 v4, 10, v3
        v_sub_u32 v4, v2, v4
        v_mul_u32_u24 v3, 1280, v3
        """)
        if j & 3: e(f"v_subrev_u32 v3, {1024*(j&3)}, v3")
        e(f"v_lshl_add_u32 v{V2_DD+j}, v4, 4, v3")
    e(f"""
    v_lshlrev_b32 v{V2_HL}, 4, v0
    s_mul_i32 s{S_MB}, s{S_WAVE}, 40960
    v_lshrrev_b32 v2, 5, v0
    v_lshlrev_b32 v2, 4, v2
    v_bfe_u32 v3, v0, 4, 1
    v_lshl_add_u32 v2, v3, 2, v2
    v_bfe_u32 v3, v0, 2, 2
    v_add_u32 v2, v2, v3
    v_mul_u32_u24 v2, 160, v2
    v_and_b32 v3, 3, v0
    v_lshl_add_u32 v2, v3, 3, v2
    v_add_u32 v{V2_RA}, s{S_MB}, v2
    s_mul_i32 s{S_HS}, s{S_R}, 196608
    s_mul_i32 s{S_T0}, s{S_WAVE}, 49152
    s_add_u32 s{S_HS}, s{S_HS}, s{S_T0}
    s_mul_i32 s{S_DS}, s{S_WAVE}, {384*1280}
    s_waitcnt lgkmcnt(0)
    s_mul_i32 s{S_T0}, s{S_C}, 160
    s_add_u32 s{SRD_D}, s{SRD_D}, s{S_T0}
    s_addc_u32 s{SRD_D+1}, s{SRD_D+1}, 0
    s_sub_u32 s{SRD_D+2}, {W_BYTES}, s{S_T0}
    s_mov_b32 s{SRD_D+3}, 0x20000
    s_mov_b32 s{SRD_O+2}, {X_BYTES}
    s_mov_b32 s{SRD_O+3}, 0x20000
    s_mov_b32 s{SRD_H+2}, {H_BYTES}
    s_mov_b32 s{SRD_H+3}, 0x20000
    """)

def p2_group(i, hflags):
    ops = []
    for j in range(5):
        pre = []
        if j == 0:
            pre = [f"s_add_u32 s{S_T0}, s{S_DS}, {i*40960}", f"s_add_u32 m0, s{S_MB}, {(i%8)*5120}", "s_nop 0"]
        if j == 4:
            pre = [f"s_add_u32 m0, s{S_MB}, {(i%8)*5120 + 4096}", "s_nop 0"]
        ops.append(pre + [f"buffer_load_dwordx4 v{V2_DD+j}, {srd(SRD_D)}, s{S_T0} offen offset:{1024*(j&3)} lds"])
    for tt in range(4):
        pre = [f"s_add_u32 s{S_T1}, s{S_HS}, {i*4096}"] if tt == 0 else []
        ops.append(pre + [f"buffer_load_dwordx4 {vr(V2_H + (i%6)*16 + tt*4, 4)}, v{V2_HL}, {srd(SRD_H)}, s{S_T1} offen offset:{1024*tt} {hflags}"])
    return ops

def p2_reads(i):
    buf = i & 1
    return [f"ds_read_b64_tr_b16 {vr(V2_A + buf*20 + t*4 + half*2, 2)}, v{V2_RA} offset:{(i%8)*5120 + half*1280 + 32*t}"
            for t in range(5) for half in range(2)]

def phase2(e, hflags):
    p2_setup(e)
    for i in range(5):
        for op in p2_group(i, hflags):
            for x in op: e(x)
    e("s_waitcnt vmcnt(40)")
    for r in p2_reads(0): e(r)
    for s in range(12):
        issued = min(s + 4, 11)
        if s < 11:
            allowed = 4 + 9 * (issued - (s + 1))
        else:
            allowed = 0
        e(f"s_waitcnt vmcnt({allowed})")
        nxt = p2_reads(s + 1) if s < 11 else []
        grp = p2_group(s + 5, hflags) if s + 5 < 12 else []
        k = 0
        for t in range(5):
            done_new = min(len(nxt), 4 * t)
            e(f"s_waitcnt lgkmcnt({min(15, (8 - 2*t) + done_new)})")
            for tt in range(4):
                acc = vr(V2_ACC + (tt*5 + t)*4, 4)
                c = acc if s else "0"
                e(f"v_mfma_f32_16x16x32_bf16 {acc}, {vr(V2_A + (s&1)*20 + t*4, 4)}, {vr(V2_H + (s%6)*16 + tt*4, 4)}, {c}")
                if k < len(nxt): e(nxt[k])
                elif k - 10 < len(grp) and k >= 10:
                    for x in grp[k - 10]: e(x)
                k += 1
    e(f"v_add_u32 v2, s{S_MB}, v{V2_HL}")
    e("s_nop 7")
    for tt in range(4):
        for t in range(5):
            e(f"ds_write_b128 v2, {vr(V2_ACC + (tt*5+t)*4, 4)} offset:{tt*5120 + t*1024}")
    e(f"""
    s_mul_i32 s{S_T0}, s{S_WAVE}, 5120
    v_add_u32 v3, s{S_T0}, v{V2_HL}
    v_add_u32 v4, 81920, v3
    s_waitcnt lgkmcnt(0)
    s_barrier
    """)
    for src in range(4):
        for t in range(5):
            e(f"ds_read_b128 {vr(64 + (src*5+t)*4, 4)}, v{3 + (src>>1)} offset:{(src&1)*40960 + t*1024}")
    e(f"""
    s_lshl_b32 s{S_T0}, s{S_R}, 6
    s_lshl_b32 s{S_T1}, s{S_WAVE}, 4
    s_add_u32 s{S_T0}, s{S_T0}, s{S_T1}
    s_mul_i32 s{S_T0}, s{S_T0}, 1280
    s_mul_i32 s{S_T1}, s{S_C}, 160
    s_add_u32 s{S_T0}, s{S_T0}, s{S_T1}
    v_and_b32 v5, 15, v0
    v_mul_u32_u24 v5, 1280, v5
    v_lshrrev_b32 v6, 4, v0
    v_lshl_add_u32 v5, v6, 3, v5
    """)
    e("s_waitcnt lgkmcnt(10)")
    for t in range(5):
        for h in range(2):
            e(f"v_pk_add_f32 {vr(64+t*4+2*h,2)}, {vr(64+t*4+2*h,2)}, {vr(84+t*4+2*h,2)}")
    e("s_waitcnt lgkmcnt(0)")
    for t in range(5):
        for h in range(2):
            e(f"v_pk_add_f32 {vr(104+t*4+2*h,2)}, {vr(104+t*4+2*h,2)}, {vr(124+t*4+2*h,2)}")
    for t in range(5):
        for h in range(2):
            e(f"v_pk_add_f32 {vr(64+t*4+2*h,2)}, {vr(64+t*4+2*h,2)}, {vr(104+t*4+2*h,2)}")
        e(f"v_cvt_pk_bf16_f32 v{144+2*t}, v{64+t*4}, v{65+t*4}")
        e(f"v_cvt_pk_bf16_f32 v{145+2*t}, v{66+t*4}, v{67+t*4}")
        e(f"buffer_store_dwordx2 {vr(144+2*t,2)}, v5, {srd(SRD_O)}, s{S_T0} offen offset:{32*t}")

def gen_two_kernels():
    e = E()
    header(e, ["; @launch kernel=ffn_p1_kernel grid=(256,1,1) block=(256,1,1) lds=122880",
               "; @launch kernel=ffn_p2_kernel grid=(256,1,1) block=(256,1,1) lds=163840"])
    kernel_begin(e, "ffn_p1_kernel")
    e("s_cmp_ge_u32 s2, 256\ns_cbranch_scc1 L_done1")
    phase1(e, "")
    e("L_done1:\ns_endpgm")
    kernel_begin(e, "ffn_p2_kernel")
    e("s_cmp_ge_u32 s2, 256\ns_cbranch_scc1 L_done2")
    phase2(e, "")
    e("L_done2:\ns_endpgm")
    e.L.append('.section .rodata,"a"')
    e.L.append(".p2align 6")
    descriptor(e, "ffn_p1_kernel")
    e.L.append(".p2align 6")
    descriptor(e, "ffn_p2_kernel")
    return e.text()

if __name__ == "__main__":
    out = sys.argv[1] if len(sys.argv) > 1 else "v1.s"
    open(out, "w").write(gen_two_kernels())
```

```python
import sys; sys.path.insert(0, "dev")
import gen
from gen import *
def build(order, nprobe=100, stride=8192+128, ptr_off=0):
    e = E()
    L = {"p1": "; @launch kernel=ffn_p1_kernel grid=(256,1,1) block=(256,1,1) lds=122880",
         "p2": "; @launch kernel=ffn_p2_kernel grid=(256,1,1) block=(256,1,1) lds=163840",
         "e": "; @launch kernel=empty_kernel grid=(256,1,1) block=(256,1,1) lds=0",
         "pr": "; @launch kernel=probe_kernel grid=(1,1,1) block=(64,1,1) lds=0"}
    header(e, [L[o] for o in order])
    kernel_begin(e, "ffn_p1_kernel")
    e("s_cmp_ge_u32 s2, 256\ns_cbranch_scc1 L_done1")
    phase1(e, "")
    e("L_done1:\ns_endpgm")
    kernel_begin(e, "ffn_p2_kernel")
    e("s_cmp_ge_u32 s2, 256\ns_cbranch_scc1 L_done2")
    phase2(e, "")
    e("L_done2:\ns_endpgm")
    names = ["ffn_p1_kernel", "ffn_p2_kernel"]
    if "e" in order:
        kernel_begin(e, "empty_kernel"); e("s_endpgm"); names.append("empty_kernel")
    if "pr" in order:
        kernel_begin(e, "probe_kernel")
        e(f"""s_cmp_ge_u32 s2, 1
        s_cbranch_scc1 L_done3
        s_load_dwordx2 s[4:5], s[0:1], {ptr_off}
        s_waitcnt lgkmcnt(0)
        s_mov_b32 s6, 1966080
        s_mov_b32 s7, 0x20000
        v_mov_b32 v1, 0
        s_mov_b32 s8, 0
        s_mov_b32 s9, 0
        L_pr:
        buffer_load_dword v2, v1, s[4:7], s8 offen
        s_waitcnt vmcnt(0)
        s_add_u32 s8, s8, {stride}
        s_add_u32 s9, s9, 1
        s_cmp_lt_u32 s9, {nprobe}
        s_cbranch_scc1 L_pr
        L_done3:
        s_endpgm""")
        names.append("probe_kernel")
    e.L.append('.section .rodata,"a"')
    for n in names:
        e.L.append(".p2align 6"); descriptor(e, n)
    return e.text()
open("pA.s", "w").write(build(["p1", "p2"]))
open("pB.s", "w").write(build(["p1", "p2", "e"]))
open("pC.s", "w").write(build(["e", "p1", "p2"]))
open("pD.s", "w").write(build(["pr", "p1", "p2"], 100))
open("pE.s", "w").write(build(["pr", "p1", "p2"], 200))
open("pF.s", "w").write(build(["p1", "p1", "p2"]))
```

```python
import sys; sys.path.insert(0, "dev")
import gen
from gen import *
def stamp_kernel(e, name, idx):
    kernel_begin(e, name)
    e(f"""s_memrealtime s[10:11]
    s_cmp_ge_u32 s2, 1
    s_cbranch_scc1 L_{name}
    s_load_dwordx2 s[4:5], s[0:1], 48
    s_waitcnt lgkmcnt(0)
    s_mov_b32 s6, 0x1000000
    s_mov_b32 s7, 0x20000
    v_mov_b32 v1, {(8<<20) + 8*idx}
    v_mov_b32 v2, s10
    buffer_store_dword v2, v1, s[4:7], 0 offen
    L_{name}:
    s_endpgm""")
def build(order, K=0, a=0, b=0):
    e = E()
    L = {"p1": "; @launch kernel=ffn_p1_kernel grid=(256,1,1) block=(256,1,1) lds=122880",
         "p2": "; @launch kernel=ffn_p2_kernel grid=(256,1,1) block=(256,1,1) lds=163840",
         "s0": "; @launch kernel=st0_kernel grid=(1,1,1) block=(64,1,1) lds=0",
         "s1": "; @launch kernel=st1_kernel grid=(1,1,1) block=(64,1,1) lds=0",
         "s2": "; @launch kernel=st2_kernel grid=(1,1,1) block=(64,1,1) lds=0",
         "sp": "; @launch kernel=spin_kernel grid=(1,1,1) block=(64,1,1) lds=0"}
    header(e, [L[o] for o in order])
    kernel_begin(e, "ffn_p1_kernel")
    e("s_cmp_ge_u32 s2, 256\ns_cbranch_scc1 L_done1")
    phase1(e, "")
    e("L_done1:\ns_endpgm")
    kernel_begin(e, "ffn_p2_kernel")
    e("s_cmp_ge_u32 s2, 256\ns_cbranch_scc1 L_done2")
    phase2(e, "")
    e("L_done2:\ns_endpgm")
    names = ["ffn_p1_kernel", "ffn_p2_kernel", "spin_kernel"]
    for i in range(3):
        if f"s{i}" in order:
            stamp_kernel(e, f"st{i}_kernel", i); names.append(f"st{i}_kernel")
    kernel_begin(e, "spin_kernel")
    e(f"""s_cmp_ge_u32 s2, 1
    s_cbranch_scc1 L_done3
    s_load_dwordx2 s[4:5], s[0:1], 48
    s_waitcnt lgkmcnt(0)
    s_add_u32 s4, s4, {8<<20}
    s_addc_u32 s5, s5, 0
    s_load_dwordx8 s[8:15], s[4:5], 0
    s_waitcnt lgkmcnt(0)
    s_sub_u32 s16, s{8+2*b}, s{8+2*a}
    s_min_u32 s16, s16, 10000
    s_mul_i32 s16, s16, {K}
    s_add_u32 s16, s16, 10000
    s_mov_b32 s17, 0
    L_sp:
    s_memrealtime s[20:21]
    s_waitcnt lgkmcnt(0)
    s_add_u32 s17, s17, 1
    s_cmp_gt_u32 s17, 100000
    s_cbranch_scc1 L_done3
    s_sub_u32 s22, s20, s8
    s_cmp_lt_u32 s22, s16
    s_cbranch_scc1 L_sp
    L_done3:
    s_endpgm""")
    e.L.append('.section .rodata,"a"')
    for n in names:
        e.L.append(".p2align 6"); descriptor(e, n)
    return e.text()
o = ["s0", "p1", "s1", "p2", "s2", "sp"]
open("qA.s", "w").write(build(o, 0))
open("qB.s", "w").write(build(o, 5, 0, 1))
open("qC.s", "w").write(build(o, 5, 1, 2))
o = ["s0", "s1", "p1", "p2", "sp"]
open("qD.s", "w").write(build(o, 5, 0, 1))
```

```python
import sys

S, D, F = 2048, 640, 1536
X_BYTES = S * D * 2
W_BYTES = D * F * 2
H_BYTES = S * F * 2
KNAME = "standalone__glu_gated_reglu__prompt_kernel"
CNT_OFF = 8 << 20
WS_BYTES = 32 << 20

class Opt:
    stamps = False
    rot1 = True
    rot2 = True
    hstore = "sc1"
    ostore = ""
O = Opt()

class E:
    def __init__(self):
        self.L = []
    def __call__(self, s):
        if isinstance(s, (list, tuple)):
            for x in s: self(x)
            return
        for ln in s.split("\n"):
            ln = ln.strip()
            if ln:
                self.L.append(ln if ln.endswith(":") else "    " + ln)
    def text(self):
        return "\n".join(self.L) + "\n"

def vr(a, n): return f"v[{a}:{a+n-1}]"
def ar(a, n): return f"a[{a}:{a+n-1}]"

SRD_X, SRD_G, SRD_U, SRD_D, SRD_O, SRD_H, SRD_B = 4, 8, 12, 16, 20, 24, 28
def srd(n): return f"s[{n}:{n+3}]"
S_WAVE = 32
S_M, S_F, S_R, S_C = 33, 34, 35, 36
S_SX, S_SW = 37, 38
S_MX, S_MW = 39, 40
S_CNT, S_KI = 41, 42
S_DX, S_DW, S_SLOT = 43, 44, 45
S_CX, S_CM2X, S_CW, S_CM2W = 46, 47, 48, 49
S_T0, S_T1, S_T2 = 50, 51, 52
S_HST = 53
S_HB, S_DB = 56, 57
S_LA, S_LB = 58, 59
S_ROT2 = 60
S_OO = 61
S_CA, S_CP = 62, 63
S_P = 64
S_PD = 76
S_ST, S_STI = 90, 92
S_SPIN = 93

XSLOT, WSLOT = 16384, 24576
LDS_W0 = 3 * XSLOT
LDS_FREE = 122880
LDS_BYTES = 163840

V2_DD, V2_HL, V2_RA, V2_RB = 8, 13, 14, 15
V_DX, V_DG, V_DU = 40, 44, 47
V_RX, V_RW = 50, 54
V_HOFF, V_CHK = 57, 58
V_A, V_B, V_ACC1 = 64, 88, 128
V2_A, V2_H, V2_ACC = 16, 64, 160
V_ST = 255

def stamp_init(e):
    if not O.stamps: return
    e(f"s_memrealtime s[{S_ST}:{S_ST+1}]\ns_mov_b32 s{S_STI}, 1\ns_waitcnt lgkmcnt(0)\nv_mov_b32 v{V_ST}, s{S_ST}")
def stamp(e):
    if not O.stamps: return
    e(f"""s_memrealtime s[{S_ST}:{S_ST+1}]
    v_cmp_eq_u32 vcc, s{S_STI}, v0
    s_add_u32 s{S_STI}, s{S_STI}, 1
    s_waitcnt lgkmcnt(0)
    v_mov_b32 v{V_ST-1}, s{S_ST}
    v_cndmask_b32 v{V_ST}, v{V_ST}, v{V_ST-1}, vcc""")
def stamp_flush(e, base):
    if not O.stamps: return
    e("s_waitcnt vmcnt(0)")
    stamp(e)
    e(f"""s_lshl_b32 s{S_ST}, s2, 2
    s_add_u32 s{S_ST}, s{S_ST}, s{S_WAVE}
    s_lshl_b32 s{S_ST}, s{S_ST}, 8
    s_add_u32 s{S_ST}, s{S_ST}, {base}
    v_lshlrev_b32 v{V_ST-1}, 2, v0
    buffer_store_dword v{V_ST}, v{V_ST-1}, {srd(SRD_H)}, s{S_ST} offen""")

def setup_first(e):
    e(f"""
    s_load_dwordx2 s[{SRD_X}:{SRD_X+1}], s[0:1], 0
    s_load_dwordx2 s[{SRD_G}:{SRD_G+1}], s[0:1], 8
    s_load_dwordx2 s[{SRD_U}:{SRD_U+1}], s[0:1], 16
    s_load_dwordx2 s[{SRD_D}:{SRD_D+1}], s[0:1], 24
    s_load_dwordx2 s[{SRD_O}:{SRD_O+1}], s[0:1], 32
    s_load_dwordx2 s[{SRD_B}:{SRD_B+1}], s[0:1], 40
    s_load_dwordx2 s[{SRD_H}:{SRD_H+1}], s[0:1], 48
    v_lshrrev_b32 v1, 6, v0
    v_and_b32 v0, 63, v0
    v_readfirstlane_b32 s{S_WAVE}, v1
    s_and_b32 s{S_T0}, s2, 4
    s_lshl_b32 s{S_T0}, s{S_T0}, 1
    s_lshr_b32 s{S_T1}, s2, 5
    s_add_u32 s{S_M}, s{S_T0}, s{S_T1}
    s_and_b32 s{S_T0}, s2, 3
    s_lshl_b32 s{S_T0}, s{S_T0}, 2
    s_bfe_u32 s{S_T1}, s2, 0x20003
    s_add_u32 s{S_F}, s{S_T0}, s{S_T1}
    """)
    if O.rot1:
        e(f"""
        s_mul_i32 s{S_T0}, s{S_M}, 3
        s_mul_i32 s{S_T1}, s{S_F}, 7
        s_add_u32 s{S_T0}, s{S_T0}, s{S_T1}
        s_mul_i32 s{S_T1}, s{S_T0}, 6554
        s_lshr_b32 s{S_T1}, s{S_T1}, 16
        s_mul_i32 s{S_T1}, s{S_T1}, 10
        s_sub_u32 s{S_KI}, s{S_T0}, s{S_T1}
        """)
    else:
        e(f"s_mov_b32 s{S_KI}, 0")
    e(f"""
    v_lshrrev_b32 v2, 3, v0
    s_lshl_b32 s{S_T0}, s{S_WAVE}, 5
    v_add_u32 v2, s{S_T0}, v2
    v_mul_u32_u24 v3, 1280, v2
    v_lshrrev_b32 v4, 4, v0
    v_and_b32 v5, 7, v0
    v_xor_b32 v4, v4, v5
    v_lshl_add_u32 v{V_DX}, v4, 4, v3
    v_xor_b32 v4, 4, v4
    v_lshl_add_u32 v{V_DX+1}, v4, 4, v3
    v_add_u32 v{V_DX+1}, {10240-1024}, v{V_DX+1}
    v_add_u32 v{V_DX+2}, {2*(10240-1024)}, v{V_DX}
    v_add_u32 v{V_DX+3}, {2*(10240-1024)}, v{V_DX+1}
    s_mul_i32 s{S_T0}, s{S_WAVE}, {16*3072}
    """)
    for j in range(3):
        e(f"""
        v_add_u32 v2, {64*j}, v0
        v_mul_u32_u24 v3, 5462, v2
        v_lshrrev_b32 v3, 16, v3
        v_mul_u32_u24 v4, 12, v3
        v_sub_u32 v4, v2, v4
        v_mul_u32_u24 v3, 3072, v3
        v_add_u32 v3, s{S_T0}, v3
        """)
        if j: e(f"v_subrev_u32 v3, {1024*j}, v3")
        e(f"""
        v_lshl_add_u32 v{V_DG+j}, v4, 4, v3
        v_xor_b32 v4, 2, v4
        v_lshl_add_u32 v{V_DU+j}, v4, 4, v3
        """)
    e(f"""
    s_lshl_b32 s{S_MX}, s{S_WAVE}, 12
    s_mul_i32 s{S_MW}, s{S_WAVE}, 3072
    s_add_u32 s{S_MW}, s{S_MW}, {LDS_W0}
    s_lshl_b32 s{S_SX}, s{S_KI}, 7
    s_mul_i32 s{S_SW}, s{S_KI}, {64*3072}
    s_mov_b32 s{SRD_X+2}, {128*1280}
    s_mov_b32 s{SRD_X+3}, 0x20000
    s_mov_b32 s{SRD_G+3}, 0x20000
    s_mov_b32 s{SRD_U+3}, 0x20000
    s_mul_i32 s{S_T0}, s{S_M}, {128*1280}
    s_mul_i32 s{S_T1}, s{S_F}, 192
    s_sub_u32 s{SRD_G+2}, {W_BYTES}, s{S_T1}
    s_mov_b32 s{SRD_U+2}, s{SRD_G+2}
    s_waitcnt lgkmcnt(0)
    s_add_u32 s{SRD_X}, s{SRD_X}, s{S_T0}
    s_addc_u32 s{SRD_X+1}, s{SRD_X+1}, 0
    s_add_u32 s{SRD_G}, s{SRD_G}, s{S_T1}
    s_addc_u32 s{SRD_G+1}, s{SRD_G+1}, 0
    s_add_u32 s{SRD_U}, s{SRD_U}, s{S_T1}
    s_addc_u32 s{SRD_U+1}, s{SRD_U+1}, 0
    """)

def p1_dma_list():
    ops = []
    for j in range(4):
        pre = [f"s_mov_b32 m0, s{S_MX}", "s_nop 0"] if j == 0 else []
        ops.append(pre + [f"buffer_load_dwordx4 v{V_DX+j}, {srd(SRD_X)}, s{S_SX} offen offset:{1024*j} lds"])
    for j in range(3):
        pre = [f"s_mov_b32 m0, s{S_MW}", "s_nop 0"] if j == 0 else []
        ops.append(pre + [f"buffer_load_dwordx4 v{V_DG+j}, {srd(SRD_G)}, s{S_SW} offen offset:{1024*j} lds"])
    for j in range(3):
        pre = [f"s_add_u32 m0, s{S_MW}, 12288", "s_nop 0"] if j == 0 else []
        ops.append(pre + [f"buffer_load_dwordx4 v{V_DU+j}, {srd(SRD_U)}, s{S_SW} offen offset:{1024*j} lds"])
    return ops

def p1_dma_advance():
    return f"""
    s_add_u32 s{S_KI}, s{S_KI}, 1
    s_cmp_eq_u32 s{S_KI}, 10
    s_cselect_b32 s{S_KI}, 0, s{S_KI}
    s_lshl_b32 s{S_SX}, s{S_KI}, 7
    s_mul_i32 s{S_SW}, s{S_KI}, {64*3072}
    s_add_u32 s{S_MX}, s{S_MX}, {XSLOT}
    s_add_u32 s{S_MW}, s{S_MW}, {WSLOT}
    s_cmp_ge_u32 s{S_MX}, {3*XSLOT}
    s_cselect_b32 s{S_T0}, {3*XSLOT}, 0
    s_cselect_b32 s{S_T1}, {3*WSLOT}, 0
    s_sub_u32 s{S_MX}, s{S_MX}, s{S_T0}
    s_sub_u32 s{S_MW}, s{S_MW}, s{S_T1}
    """.strip().split("\n")

def setup_rest(e):
    e(f"""
    s_and_b32 s{S_T0}, s2, 7
    s_lshl_b32 s{S_T0}, s{S_T0}, 2
    s_lshr_b32 s{S_T1}, s2, 6
    s_add_u32 s{S_R}, s{S_T0}, s{S_T1}
    s_bfe_u32 s{S_C}, s2, 0x30003
    s_mul_i32 s{S_T0}, s{S_C}, 160
    s_add_u32 s{SRD_D}, s{SRD_D}, s{S_T0}
    s_addc_u32 s{SRD_D+1}, s{SRD_D+1}, 0
    s_sub_u32 s{SRD_D+2}, {W_BYTES}, s{S_T0}
    s_mov_b32 s{SRD_D+3}, 0x20000
    s_mov_b32 s{SRD_O+2}, {X_BYTES}
    s_mov_b32 s{SRD_O+3}, 0x20000
    s_mov_b32 s{SRD_B+2}, 256
    s_mov_b32 s{SRD_B+3}, 0x20000
    """)
    e(f"""
    v_and_b32 v2, 31, v0
    s_lshr_b32 s{S_T0}, s{S_WAVE}, 1
    s_lshl_b32 s{S_T0}, s{S_T0}, 13
    v_lshlrev_b32 v3, 7, v2
    v_add_u32 v3, s{S_T0}, v3
    v_bfe_u32 v4, v0, 1, 3
    v_lshrrev_b32 v5, 5, v0
    v_xor_b32 v4, v4, v5
    """)
    for s in range(4):
        if s: e(f"v_xor_b32 v5, {2*s}, v4")
        e(f"v_lshl_add_u32 v{V_RX+s}, v{5 if s else 4}, 4, v3")
    e(f"""
    v_bfe_u32 v2, v0, 4, 1
    v_lshrrev_b32 v3, 5, v0
    v_lshlrev_b32 v3, 3, v3
    v_bfe_u32 v4, v0, 2, 2
    v_add_u32 v3, v3, v4
    v_mul_u32_u24 v3, 192, v3
    v_mul_u32_u24 v4, 12288, v2
    v_add_u32 v3, v3, v4
    v_and_b32 v4, 3, v0
    v_lshl_add_u32 v3, v4, 3, v3
    v_add_u32 v3, {LDS_W0}, v3
    v_lshlrev_b32 v2, 5, v2
    s_and_b32 s{S_T0}, s{S_WAVE}, 1
    s_mul_i32 s{S_T0}, s{S_T0}, 96
    """)
    for a in range(3):
        e(f"""
        s_add_u32 s{S_T1}, s{S_T0}, {32*a}
        v_xor_b32 v4, s{S_T1}, v2
        v_add_u32 v{V_RW+a}, v3, v4
        """)
    e(f"""
    s_mov_b32 s{S_CX}, {XSLOT}
    s_mov_b32 s{S_CM2X}, {-2*XSLOT}
    s_mov_b32 s{S_CW}, {WSLOT}
    s_mov_b32 s{S_CM2W}, {-2*WSLOT}
    s_mov_b32 s{S_SLOT}, 0
    s_mov_b32 s{S_CNT}, 0
    """)
    e(f"""
    v_bfe_u32 v2, v0, 4, 1
    v_lshlrev_b32 v2, 10, v2
    v_lshrrev_b32 v3, 5, v0
    v_lshl_add_u32 v2, v3, 8, v2
    v_and_b32 v3, 15, v0
    v_lshl_add_u32 v{V_HOFF}, v3, 4, v2
    s_lshr_b32 s{S_T0}, s{S_WAVE}, 1
    s_lshl_b32 s{S_T1}, s{S_M}, 1
    s_add_u32 s{S_T0}, s{S_T0}, s{S_T1}
    s_mul_i32 s{S_T0}, s{S_T0}, 196608
    s_and_b32 s{S_T1}, s{S_WAVE}, 1
    s_mul_i32 s{S_T1}, s{S_T1}, 3
    s_mul_i32 s{S_T2}, s{S_F}, 6
    s_add_u32 s{S_T1}, s{S_T1}, s{S_T2}
    """)
    for a in range(3):
        e(f"""
        s_add_u32 s{S_T2}, s{S_T1}, {a}
        s_lshr_b32 s{S_HST+a}, s{S_T2}, 1
        s_lshl_b32 s{S_HST+a}, s{S_HST+a}, 12
        s_and_b32 s{S_T2}, s{S_T2}, 1
        s_lshl_b32 s{S_T2}, s{S_T2}, 9
        s_add_u32 s{S_HST+a}, s{S_HST+a}, s{S_T2}
        s_add_u32 s{S_HST+a}, s{S_HST+a}, s{S_T0}
        """)
    for j in range(5):
        e(f"""
        v_add_u32 v2, {64*j}, v0
        v_mul_u32_u24 v3, 6554, v2
        v_lshrrev_b32 v3, 16, v3
        v_mul_u32_u24 v4, 10, v3
        v_sub_u32 v4, v2, v4
        v_mul_u32_u24 v3, 1280, v3
        """)
        if j & 3: e(f"v_subrev_u32 v3, {1024*(j&3)}, v3")
        e(f"v_lshl_add_u32 v{V2_DD+j}, v4, 4, v3")
    e(f"""
    v_lshlrev_b32 v{V2_HL}, 4, v0
    s_mul_i32 s{S_LA}, s{S_WAVE}, 10240
    s_add_u32 s{S_LA}, s{S_LA}, {LDS_FREE}
    s_mul_i32 s{S_LB}, s{S_WAVE}, 30720
    v_lshrrev_b32 v2, 5, v0
    v_lshlrev_b32 v2, 4, v2
    v_bfe_u32 v3, v0, 4, 1
    v_lshl_add_u32 v2, v3, 2, v2
    v_bfe_u32 v3, v0, 2, 2
    v_add_u32 v2, v2, v3
    v_mul_u32_u24 v2, 160, v2
    v_and_b32 v3, 3, v0
    v_lshl_add_u32 v2, v3, 3, v2
    v_add_u32 v{V2_RA}, s{S_LA}, v2
    v_add_u32 v{V2_RB}, s{S_LB}, v2
    s_mul_i32 s{S_HB}, s{S_R}, 196608
    s_mul_i32 s{S_T0}, s{S_WAVE}, 49152
    s_add_u32 s{S_HB}, s{S_HB}, s{S_T0}
    s_mul_i32 s{S_DB}, s{S_WAVE}, {384*1280}
    """)
    if O.rot2:
        e(f"""
        s_mul_i32 s{S_T0}, s{S_R}, 5462
        s_lshr_b32 s{S_T0}, s{S_T0}, 16
        s_mul_i32 s{S_T0}, s{S_T0}, 12
        s_sub_u32 s{S_ROT2}, s{S_R}, s{S_T0}
        """)
    else:
        e(f"s_mov_b32 s{S_ROT2}, 0")
    for i in range(12):
        e(f"""
        s_lshl_b32 s{S_T0}, s{S_ROT2}, 12
        s_add_u32 s{S_P+i}, s{S_HB}, s{S_T0}
        s_mul_i32 s{S_T0}, s{S_ROT2}, 40960
        s_add_u32 s{S_PD+i}, s{S_DB}, s{S_T0}
        """)
        if i < 11:
            e(f"s_add_u32 s{S_ROT2}, s{S_ROT2}, 1\ns_cmp_eq_u32 s{S_ROT2}, 12\ns_cselect_b32 s{S_ROT2}, 0, s{S_ROT2}")
    e(f"""
    s_lshl_b32 s{S_T0}, s{S_R}, 6
    s_lshl_b32 s{S_T1}, s{S_WAVE}, 4
    s_add_u32 s{S_T0}, s{S_T0}, s{S_T1}
    s_mul_i32 s{S_T0}, s{S_T0}, 1280
    s_mul_i32 s{S_T1}, s{S_C}, 160
    s_add_u32 s{S_OO}, s{S_T0}, s{S_T1}
    s_lshl_b32 s{S_T0}, s{S_M}, 2
    s_lshr_b32 s{S_T1}, s{S_F}, 2
    s_add_u32 s{S_T0}, s{S_T0}, s{S_T1}
    s_lshl_b32 s{S_T0}, s{S_T0}, 8
    s_add_u32 s{S_CA}, s{S_T0}, {CNT_OFF}
    s_lshr_b32 s{S_T0}, s{S_R}, 1
    s_lshl_b32 s{S_T0}, s{S_T0}, 2
    s_add_u32 s{S_T0}, s{S_T0}, s{S_WAVE}
    s_lshl_b32 s{S_T0}, s{S_T0}, 8
    s_add_u32 s{S_CP}, s{S_T0}, {CNT_OFF}
    """)
    for i in range(48): e(f"v_mov_b64 {vr(V_ACC1+2*i, 2)}, 0")

def p1_reads(step):
    buf = step & 1
    def rb(bt): return f"ds_read_b128 {vr(V_B + buf*8 + bt*4, 4)}, v{V_RX+step} offset:{bt*4096}"
    def ra(a, half): return f"ds_read_b64_tr_b16 {vr(V_A + buf*12 + a*4 + half*2, 2)}, v{V_RW+a} offset:{(step*16 + half*4)*192}"
    return [rb(0), ra(0,0), ra(0,1), rb(1), ra(1,0), ra(1,1), ra(2,0), ra(2,1)]

def p1_mfma(step, i):
    buf = step & 1
    a, bt = i >> 1, i & 1
    acc = vr(V_ACC1 + 16*i, 16)
    return f"v_mfma_f32_32x32x16_bf16 {acc}, {vr(V_A + buf*12 + a*4, 4)}, {vr(V_B + buf*8 + bt*4, 4)}, {acc}"

def p1_rot_addr():
    L = [f"s_add_u32 s{S_SLOT}, s{S_SLOT}, 1",
         f"s_cmp_eq_u32 s{S_SLOT}, 3",
         f"s_cselect_b32 s{S_SLOT}, 0, s{S_SLOT}",
         f"s_cselect_b32 s{S_DX}, s{S_CM2X}, s{S_CX}",
         f"s_cselect_b32 s{S_DW}, s{S_CM2W}, s{S_CW}"]
    V = [f"v_add_u32 v{V_RX+s}, s{S_DX}, v{V_RX+s}" for s in range(4)] + \
        [f"v_add_u32 v{V_RW+a}, s{S_DW}, v{V_RW+a}" for a in range(3)]
    return L, V

WAITS = {0: 5, 1: 6, 2: 6, 4: 8}
def p1_step(e, step, nxt_reads, extra):
    for i in range(6):
        if i in WAITS: e(f"s_waitcnt lgkmcnt({WAITS[i]})")
        e(p1_mfma(step, i))
        e(nxt_reads[2*i:2*i+2])
        e(extra.get(i, []))

def p1_body(e, ops, adv, entry_label=None, end_wait=None, rot=True):
    r0 = p1_reads(0)
    e(r0[0:2])
    for i in range(1, 6):
        e(p1_mfma(3, i))
        e(r0[2*i:2*i+2])
        if i == 4: e(ops[0])
        if i == 5: e(ops[1])
    if entry_label: e(f"{entry_label}:")
    p1_step(e, 0, p1_reads(1), {3: ops[2], 4: ops[3], 5: ops[4]})
    p1_step(e, 1, p1_reads(2), {3: ops[5], 4: ops[6], 5: ops[7]})
    sal, val = p1_rot_addr() if rot else ([], [])
    p1_step(e, 2, p1_reads(3), {0: sal, 3: ops[8], 4: ops[9] + val[:4], 5: val[4:] + adv})
    e("s_waitcnt lgkmcnt(5)")
    e(p1_mfma(3, 0))
    e(end_wait)
    e("s_barrier")
    stamp(e)

def wd_slot(i):
    j = i % 8
    return (S_LA, V2_RA, j * 5120) if j < 2 else (S_LB, V2_RB, (j - 2) * 5120)

def wd_dma(i):
    sb, _, off = wd_slot(i)
    ops = []
    for j in range(5):
        pre = []
        if j == 0: pre = [f"s_add_u32 m0, s{sb}, {off}", "s_nop 0"]
        if j == 4: pre = [f"s_add_u32 m0, s{sb}, {off + 4096}", "s_nop 0"]
        ops.append(pre + [f"buffer_load_dwordx4 v{V2_DD+j}, {srd(SRD_D)}, s{S_PD+i} offen offset:{1024*(j&3)} lds"])
    return ops

def wd_reads(i):
    _, va, off = wd_slot(i)
    def dst(t, half):
        return ar(20*i + 4*t + 2*half, 2) if i < 4 else vr(V2_A + (i & 1)*20 + t*4 + half*2, 2)
    return [f"ds_read_b64_tr_b16 {dst(t, half)}, v{va} offset:{off + half*1280 + 32*t}" for t in range(5) for half in range(2)]

def h_loads(i):
    return [f"buffer_load_dwordx4 {vr(V2_H + (i%6)*16 + tt*4, 4)}, v{V2_HL}, {srd(SRD_H)}, s{S_P+i} offen offset:{1024*tt} sc1" for tt in range(4)]

def one_lane(e, lines):
    e("s_mov_b64 exec, 1")
    e(lines)
    e("s_mov_b64 exec, -1")

def kernel(e):
    e("s_cmp_ge_u32 s2, 256\ns_cbranch_scc1 L_done")
    stamp_init(e)
    setup_first(e)
    e(f"s_mov_b32 s{SRD_H+2}, {WS_BYTES}\ns_mov_b32 s{SRD_H+3}, 0x20000")
    e(f"""
    s_or_b32 s{S_T2}, s{S_F}, s{S_WAVE}
    s_cmp_lg_u32 s{S_T2}, 0
    s_cbranch_scc1 L_nozero
    s_lshl_b32 s{S_T0}, s{S_M}, 10
    s_add_u32 s{S_T0}, s{S_T0}, {CNT_OFF}
    v_lshlrev_b32 v2, 8, v0
    v_mov_b32 v3, 0
    s_mov_b64 exec, 15
    buffer_store_dword v3, v2, {srd(SRD_H)}, s{S_T0} offen sc1
    s_mov_b64 exec, -1
    L_nozero:
    """)
    ops = p1_dma_list()
    for st in range(2):
        e(ops)
        e(p1_dma_advance())
    e(ops[:2])
    setup_rest(e)
    stamp(e)
    e("s_waitcnt vmcnt(12)\ns_barrier")
    e(p1_reads(0))
    e(f"""
    s_or_b32 s{S_T2}, s{S_F}, s{S_WAVE}
    s_cmp_lg_u32 s{S_T2}, 0
    s_cbranch_scc1 L_p1_entry
    s_lshl_b32 s{S_T0}, s{S_M}, 2
    v_mov_b32 v2, 0
    v_mov_b32 v3, 1
    s_mov_b64 exec, 1
    buffer_store_dword v3, v2, {srd(SRD_B)}, s{S_T0} offen sc1
    s_mov_b64 exec, -1
    s_branch L_p1_entry
    """)
    e("L_p1_loop:")
    p1_body(e, ops, p1_dma_advance(), "L_p1_entry", "s_waitcnt vmcnt(10) lgkmcnt(0)")
    e(f"s_add_u32 s{S_CNT}, s{S_CNT}, 1\ns_cmp_lt_u32 s{S_CNT}, 8\ns_cbranch_scc1 L_p1_loop")
    p1_body(e, wd_dma(0) + wd_dma(1), [], None, "s_waitcnt vmcnt(10) lgkmcnt(0)")
    chk = [[f"v_and_b32 v2, 15, v0", "v_lshlrev_b32 v2, 2, v2",
            f"buffer_load_dword v{V_CHK}, v2, {srd(SRD_B)}, 0 offen sc1"]] + [[] for _ in range(9)]
    p1_body(e, chk, [], None, "s_waitcnt lgkmcnt(0)", rot=False)
    def epi(i):
        c = V_ACC1 + 16*i
        L = [f"v_max_f32 v{c+j}, 0, v{c+j}" for j in range(8)]
        L += [f"v_pk_mul_f32 {vr(c+2*j,2)}, {vr(c+2*j,2)}, {vr(c+8+2*j,2)}" for j in range(4)]
        L += [f"v_cvt_pk_bf16_f32 v{c+8+j}, v{c+2*j}, v{c+2*j+1}" for j in range(4)]
        L += [f"buffer_store_dwordx4 {vr(c+8,4)}, v{V_HOFF}, {srd(SRD_H)}, s{S_HST+(i>>1)} offen offset:{(i&1)*2048} {O.hstore}"]
        return L
    for i in range(1, 6): e(p1_mfma(3, i))
    e("s_nop 7")
    for i in range(6): e(epi(i))
    stamp(e)
    e(wd_dma(2) + wd_dma(3) + wd_dma(4))
    e("s_waitcnt vmcnt(21)")
    e(wd_reads(0))
    e(f"""
    s_mov_b32 s{S_SPIN}, 0
    L_chk:
    v_cmp_ne_u32 vcc, 1, v{V_CHK}
    s_cbranch_vccz L_chk_ok
    s_add_u32 s{S_SPIN}, s{S_SPIN}, 1
    s_cmp_gt_u32 s{S_SPIN}, 20000
    s_cbranch_scc1 L_chk_ok
    buffer_load_dword v{V_CHK}, v2, {srd(SRD_B)}, 0 offen sc1
    s_waitcnt vmcnt(0)
    s_branch L_chk
    L_chk_ok:
    """)
    e(wd_reads(1))
    stamp(e)
    e("s_waitcnt vmcnt(15)\ns_barrier")
    stamp(e)
    e(f"""
    s_cmp_lg_u32 s{S_WAVE}, 0
    s_cbranch_scc1 L_nosig
    v_mov_b32 v2, 0
    v_mov_b32 v3, 1
    s_mov_b64 exec, 1
    buffer_atomic_add v3, v2, {srd(SRD_H)}, s{S_CA} offen sc1
    s_mov_b64 exec, -1
    L_nosig:
    """)
    e(wd_dma(5) + wd_dma(6) + wd_dma(7))
    e("s_waitcnt lgkmcnt(0)")
    e(wd_dma(8) + wd_dma(9))
    e("s_waitcnt vmcnt(30)")
    e(wd_reads(2) + wd_reads(3))
    e("s_waitcnt lgkmcnt(0)")
    e(wd_dma(10) + wd_dma(11))
    stamp(e)
    e(f"""
    v_mov_b32 v2, 0
    s_mov_b32 s{S_SPIN}, 0
    L_poll:
    buffer_load_dword v3, v2, {srd(SRD_H)}, s{S_CP} offen sc1
    s_add_u32 s{S_SPIN}, s{S_SPIN}, 1
    s_cmp_gt_u32 s{S_SPIN}, 20000
    s_cbranch_scc1 L_poll_ok
    s_waitcnt vmcnt(0)
    v_cmp_ne_u32 vcc, 4, v3
    s_cbranch_vccnz L_poll
    L_poll_ok:
    """)
    stamp(e)
    for i in range(3): e(h_loads(i))
    for s in range(12):
        e(f"s_waitcnt vmcnt({4 * (min(s + 2, 11) - s)})")
        stamp(e)
        nxt = wd_reads(s + 1) if 3 <= s < 11 else []
        hl = h_loads(s + 3) if s + 3 < 12 else []
        k = 0
        for t in range(5):
            if s >= 4:
                e(f"s_waitcnt lgkmcnt({min(15, (8 - 2*t) + min(len(nxt), 4*t))})")
            for tt in range(4):
                acc = vr(V2_ACC + (tt*5 + t)*4, 4)
                c = acc if s else "0"
                a = ar(20*s + 4*t, 4) if s < 4 else vr(V2_A + (s&1)*20 + t*4, 4)
                e(f"v_mfma_f32_16x16x32_bf16 {acc}, {a}, {vr(V2_H + (s%6)*16 + tt*4, 4)}, {c}")
                if k < len(nxt): e(nxt[k])
                if k >= 10 and (k - 10) % 3 == 0 and (k - 10) // 3 < len(hl): e(hl[(k - 10) // 3])
                k += 1
    stamp(e)
    e(f"v_add_u32 v2, s{S_LB}, v{V2_HL}")
    e("s_nop 7")
    for tt in range(4):
        for t in range(5):
            e(f"ds_write_b128 v2, {vr(V2_ACC + (tt*5+t)*4, 4)} offset:{tt*5120 + t*1024}")
    e(f"""
    s_mul_i32 s{S_T0}, s{S_WAVE}, 5120
    v_add_u32 v3, s{S_T0}, v{V2_HL}
    v_add_u32 v4, 61440, v3
    s_waitcnt lgkmcnt(0)
    s_barrier
    """)
    stamp(e)
    for src in range(4):
        for t in range(5):
            e(f"ds_read_b128 {vr(64 + (src*5+t)*4, 4)}, v{3 + (src>>1)} offset:{(src&1)*30720 + t*1024}")
    e(f"""
    v_and_b32 v5, 15, v0
    v_mul_u32_u24 v5, 1280, v5
    v_lshrrev_b32 v6, 4, v0
    v_lshl_add_u32 v5, v6, 3, v5
    """)
    e("s_waitcnt lgkmcnt(10)")
    for t in range(5):
        for h in range(2):
            e(f"v_pk_add_f32 {vr(64+t*4+2*h,2)}, {vr(64+t*4+2*h,2)}, {vr(84+t*4+2*h,2)}")
    e("s_waitcnt lgkmcnt(0)")
    for t in range(5):
        for h in range(2):
            e(f"v_pk_add_f32 {vr(104+t*4+2*h,2)}, {vr(104+t*4+2*h,2)}, {vr(124+t*4+2*h,2)}")
    for t in range(5):
        for h in range(2):
            e(f"v_pk_add_f32 {vr(64+t*4+2*h,2)}, {vr(64+t*4+2*h,2)}, {vr(104+t*4+2*h,2)}")
        e(f"v_cvt_pk_bf16_f32 v{144+2*t}, v{64+t*4}, v{65+t*4}")
        e(f"v_cvt_pk_bf16_f32 v{145+2*t}, v{66+t*4}, v{67+t*4}")
        e(f"buffer_store_dwordx2 {vr(144+2*t,2)}, v5, {srd(SRD_O)}, s{S_OO} offen offset:{32*t} {O.ostore}")
    stamp(e)
    stamp_flush(e, 16 << 20)
    e("L_done:\ns_endpgm")

def gen():
    e = E()
    e.L += ["; ReGLU FFN  out = (relu(x Wg) * (x Wu)) Wd   S=2048 D=640 F=1536 bf16, one launch",
            f"; @launch grid=(256,1,1) block=(256,1,1) lds={LDS_BYTES}",
            '.amdgcn_target "amdgcn-amd-amdhsa--gfx950"', ".text", f".globl {KNAME}", ".p2align 8",
            f".type {KNAME},@function", f"{KNAME}:"]
    kernel(e)
    e.L += ['.section .rodata,"a"', ".p2align 6", f".amdhsa_kernel {KNAME}",
            "  .amdhsa_next_free_vgpr 336", "  .amdhsa_next_free_sgpr 96", "  .amdhsa_accum_offset 256",
            "  .amdhsa_group_segment_fixed_size 0", "  .amdhsa_kernarg_size 56", "  .amdhsa_user_sgpr_count 2",
            "  .amdhsa_user_sgpr_kernarg_segment_ptr 1", "  .amdhsa_system_sgpr_workgroup_id_x 1", ".end_amdhsa_kernel"]
    return e.text()

if __name__ == "__main__":
    out = sys.argv[1]
    for a in sys.argv[2:]:
        k, _, v = a.partition("=")
        cur = getattr(O, k)
        setattr(O, k, (v == "1") if isinstance(cur, bool) else type(cur)(v))
    open(out, "w").write(gen())
```

```python
import sys

S, D, F = 2048, 640, 1536
X_BYTES = S * D * 2
W_BYTES = D * F * 2
KNAME = "standalone__glu_gated_reglu__prompt_kernel"
CNT_OFF = 8 << 20
WP_OFF = 10 << 20
WS_BYTES = 32 << 20

class Opt:
    stamps = False
    smin = False
    m162 = True
    nt0 = 0
    ntr = False
    fine = False
    pro = False
    cyc = False
    G = 10
    hstore = "sc1"
    ostore = ""
    b7 = 10
    b8 = 6
    pre = 12
    pollat = 10
    cpre = True
    cpn = 32
    elag = 2
    hd = 3
    w0 = 1.0
    wd = 2.0
    en = 3
    rpa = 1
    nrest = 10
    norp = False
    lock = 0
    rpe = 0
    wr = 64
    wstep = 2
    late = False
    ring = True
    hn = 8
    rw0 = 24
    rbar = 46
    rpg = 1
    chk0 = True
    ex1 = True
    rlag = 1
    stg = 46
    pg = 0
    nodma = False
    nobar = False
O = Opt()

class E:
    def __init__(self): self.L = []
    def __call__(self, s):
        if isinstance(s, (list, tuple)):
            for x in s: self(x)
            return
        for ln in s.split("\n"):
            ln = ln.strip()
            if ln: self.L.append(ln if ln.endswith(":") else "    " + ln)
    def text(self): return "\n".join(self.L) + "\n"

def vr(a, n): return f"v[{a}:{a+n-1}]"
def ar(a, n): return f"a[{a}:{a+n-1}]"
def lines(s): return [x.strip() for x in s.strip().split("\n") if x.strip()]

SRD_X, SRD_G, SRD_U, SRD_D, SRD_O, SRD_H, SRD_B = 4, 8, 12, 16, 20, 24, 28
def srd(n): return f"s[{n}:{n+3}]"
S_WAVE = 32
S_M, S_F, S_R, S_C = 33, 34, 35, 36
S_SX, S_SW = 37, 38
S_MX, S_MG = 39, 40
S_GRP = 42
S_ROT = 43
S_MR = 41
S_T0, S_T1, S_T2, S_T3 = 47, 48, 49, 46
S_HST = 50
S_LW = 55
S_OO = 56
S_CP = 58
S_DS = 59
S_RP0, S_RP1 = 61, 62
S_P = 64
S_WB = 78
S_PC = 82
S_ST, S_STI = 90, 92
S_SPIN = 93

SLOT = 40960
LDS_BYTES = 163840
RPB = 3 * SLOT

V_L16, V_L16B = 6, 7
V_DBG, V_ONE = 8, 13
V_RD, V_RR0, V_RT = 9, 11, 16
V_FL, V_SG, V_SH = 24, 25, 26
V_ST = 31
V_DX, V_DG = 40, 44
V_RX, V_RW = (32, 48), (34, 50)
V_HOFF, V_CHK, V_CHA = 57, 58, 59
V2_HL = 60
V_A, V_B, V_ACC1 = 64, 112, 160
V2_H, V2_ACC = 64, 160

def clk(): return "s_memtime" if O.cyc else "s_memrealtime"
def stamp_init(e):
    if not O.stamps: return
    e(f"{clk()} s[{S_ST}:{S_ST+1}]\ns_mov_b32 s{S_STI}, 1\ns_waitcnt lgkmcnt(0)\nv_mov_b32 v{V_ST}, s{S_ST}")
def stamp(e, force=False):
    if not O.stamps or (O.smin and not force): return
    e(f"""{clk()} s[{S_ST}:{S_ST+1}]
    v_cmp_eq_u32 vcc, s{S_STI}, v0
    s_add_u32 s{S_STI}, s{S_STI}, 1
    s_waitcnt lgkmcnt(0)
    v_mov_b32 v{V_ST-1}, s{S_ST}
    v_cndmask_b32 v{V_ST}, v{V_ST}, v{V_ST-1}, vcc""")
def stamp_flush(e, base):
    if not O.stamps: return
    e("s_waitcnt vmcnt(0)")
    stamp(e, True)
    e(f"""s_lshl_b32 s{S_ST}, s2, 2
    s_add_u32 s{S_ST}, s{S_ST}, s{S_WAVE}
    s_lshl_b32 s{S_ST}, s{S_ST}, 8
    s_add_u32 s{S_ST}, s{S_ST}, {base}
    v_lshlrev_b32 v{V_ST-1}, 2, v0
    buffer_store_dword v{V_ST}, v{V_ST-1}, {srd(SRD_H)}, s{S_ST} offen""")

class VQ:
    def __init__(self, e): self.e, self.q = e, []
    def issue(self, op, tag): self.e(op); self.q.append(tag)
    def count(self, tags):
        idx = [i for i, t in enumerate(self.q) if t in tags]
        assert all(t in self.q for t in tags) or O.nodma, tags
        n = len(self.q) - 1 - max(idx, default=-1)
        assert n < 64
        return n
    def wait(self, tags, extra=""): self.e(f"s_waitcnt vmcnt({self.count(tags)}) {extra}".strip())

class Op:
    def __init__(self, ins, tag, pre=()): self.ins, self.tag, self.pre = ins, tag, list(pre)
def masked(ins, mask=1):
    return f"s_mov_b64 exec, {mask}\n{ins}\ns_mov_b64 exec, -1" if O.ex1 else ins
def emit(e, vq, x):
    if isinstance(x, Op):
        e(x.pre)
        if x.pre and " m0," in x.pre[-1]: e("s_nop 0")
        vq.issue(x.ins, x.tag)
    else: e(x)

def tile1():
    if O.m162:
        return f"""s_lshr_b32 s{S_M}, s2, 4
    s_and_b32 s{S_T0}, s2, 7
    s_bfe_u32 s{S_T1}, s2, 0x10003
    s_lshl1_add_u32 s{S_F}, s{S_T0}, s{S_T1}"""
    return f"""s_and_b32 s{S_T0}, s2, 4
    s_lshl_b32 s{S_T0}, s{S_T0}, 1
    s_lshr_b32 s{S_T1}, s2, 5
    s_add_u32 s{S_M}, s{S_T0}, s{S_T1}
    s_and_b32 s{S_T0}, s2, 3
    s_bfe_u32 s{S_T1}, s2, 0x20003
    s_lshl2_add_u32 s{S_F}, s{S_T0}, s{S_T1}"""

def setup_x(e):
    e(f"""
    s_load_dwordx2 s[{SRD_X}:{SRD_X+1}], s[0:1], 0
    s_load_dwordx2 s[{SRD_G}:{SRD_G+1}], s[0:1], 8
    s_load_dwordx2 s[{SRD_U}:{SRD_U+1}], s[0:1], 16
    """)
    if O.cpre:
        e(f"""
        s_getpc_b64 s[{S_PC}:{S_PC+1}]
        L_pc:
        s_bfe_u32 s{S_T0}, s2, 0x20003
        s_mul_i32 s{S_T0}, s{S_T0}, {O.cpn}
        v_add_lshl_u32 v2, v0, s{S_T0}, 7
        v_min_u32 v2, L_end - L_pc - 4, v2
        v_mov_b32 v3, 0
        v_lshl_add_u64 v[2:3], v[2:3], 0, s[{S_PC}:{S_PC+1}]
        v_cmp_gt_u32 vcc, {O.cpn}, v0
        s_and_saveexec_b64 s[{S_PC+4}:{S_PC+5}], vcc
        s_cbranch_execz L_nocp
        global_load_dword v5, v[2:3], off
        L_nocp:
        s_mov_b64 exec, -1
        """)
    if O.lock: O.G = 10 - O.lock
    mg = (65536 + O.G - 1) // O.G
    e(f"""
    v_lshrrev_b32 v1, 6, v0
    v_and_b32 v0, 63, v0
    v_readfirstlane_b32 s{S_WAVE}, v1
    {tile1()}
    {f"s_mul_i32 s{S_T1}, s{S_T1}, {O.G // 2}{chr(10)}s_add_u32 s{S_T0}, s{S_M}, s{S_T0}{chr(10)}s_add_u32 s{S_T0}, s{S_T0}, s{S_T1}" if O.m162 and (O.G == 10 or O.lock) else f"s_add_u32 s{S_T0}, s{S_M}, s{S_F}"}
    s_mul_i32 s{S_T1}, s{S_T0}, {mg}
    s_lshr_b32 s{S_T1}, s{S_T1}, 16
    s_mul_i32 s{S_T1}, s{S_T1}, {O.G}
    s_sub_u32 s{S_T0}, s{S_T0}, s{S_T1}
    """)
    if O.lock: e(f"s_lshl_b32 s{S_ROT}, s{S_T0}, 7\ns_movk_i32 s{S_SX}, {128 * (10 - O.lock)}")
    elif 10 % O.G == 0: e(f"s_mul_i32 s{S_SX}, s{S_T0}, {1280 // O.G}")
    else: e(f"s_mul_i32 s{S_T0}, s{S_T0}, {10 * mg}\ns_lshr_b32 s{S_SX}, s{S_T0}, 16\ns_lshl_b32 s{S_SX}, s{S_SX}, 7")
    e(f"""
    v_lshrrev_b32 v2, 3, v0
    v_mul_u32_u24 v3, 1280, v2
    v_lshrrev_b32 v4, 4, v0
    v_and_b32 v1, 7, v0
    v_xor_b32 v4, v4, v1
    v_lshl_add_u32 v{V_DX}, v4, 4, v3
    v_xor_b32 v{V_DX+1}, 64, v{V_DX}
    v_add_u32 v{V_DX+1}, {10240-1024}, v{V_DX+1}
    v_add_u32 v{V_DX+2}, {2*(10240-1024)}, v{V_DX}
    v_add_u32 v{V_DX+3}, {2*(10240-1024)}, v{V_DX+1}
    s_lshl2_add_u32 s{S_T0}, s{S_M}, s{S_WAVE}
    s_mov_b32 s{SRD_X+2}, 40960
    s_mul_i32 s{S_T0}, s{S_T0}, s{SRD_X+2}
    s_mov_b32 s{SRD_X+3}, 0x20000
    s_lshl_b32 s{S_MX}, s{S_WAVE}, 12
    s_mov_b32 m0, s{S_MX}
    s_waitcnt lgkmcnt(0)
    s_add_u32 s{SRD_X}, s{SRD_X}, s{S_T0}
    s_addc_u32 s{SRD_X+1}, s{SRD_X+1}, 0
    """)

def setup_w(e):
    e(f"""
    s_load_dwordx2 s[{SRD_D}:{SRD_D+1}], s[0:1], 24
    s_load_dwordx2 s[{SRD_O}:{SRD_O+1}], s[0:1], 32
    s_load_dwordx2 s[{SRD_B}:{SRD_B+1}], s[0:1], 40
    s_load_dwordx2 s[{SRD_H}:{SRD_H+1}], s[0:1], 48
    s_mul_i32 s{S_T0}, s{S_WAVE}, {16*3072}
    s_mul_i32 s{S_T1}, s{S_F}, 192
    s_add_u32 s{S_T1}, s{S_T1}, s{S_T0}
    s_add_u32 s{SRD_G}, s{SRD_G}, s{S_T1}
    s_addc_u32 s{SRD_G+1}, s{SRD_G+1}, 0
    s_add_u32 s{SRD_U}, s{SRD_U}, s{S_T1}
    s_addc_u32 s{SRD_U+1}, s{SRD_U+1}, 0
    s_sub_u32 s{SRD_G+2}, {W_BYTES}, s{S_T1}
    s_mov_b32 s{SRD_U+2}, s{SRD_G+2}
    s_mov_b32 s{SRD_G+3}, 0x20000
    s_mov_b32 s{SRD_U+3}, 0x20000
    s_mul_i32 s{S_SW}, s{S_SX}, 1536
    s_mul_i32 s{S_MG}, s{S_WAVE}, 3072
    s_movk_i32 s{S_T0}, 2880
    v_lshlrev_b32 v{V_L16}, 4, v0
    v_mul_u32_u24 v2, 5462, v0
    """)
    for j in range(3):
        if j: e(f"v_add_u32 v2, {64*5462}, v2")
        e(f"""
        v_lshrrev_b32 v3, 16, v2
        v_lshrrev_b32 v4, 14, v2
        v_and_b32 v4, 32, v4
        v_xor_b32 v4, v4, v{V_L16}
        v_mad_u32_u24 v{V_DG+j}, v3, s{S_T0}, v4
        """)

def stage_ops(st):
    b = (st % 3) * SLOT
    ops = []
    for j in range(4):
        ops.append(Op(f"buffer_load_dwordx4 v{V_DX+j}, {srd(SRD_X)}, s{S_SX} offen offset:{1024*j} lds", ("s", st),
                      [f"s_add_u32 m0, s{S_MX}, {b}"] if j == 0 else []))
    for g, sr in enumerate((SRD_G, SRD_U)):
        for j in range(3):
            ops.append(Op(f"buffer_load_dwordx4 v{V_DG+j}, {srd(sr)}, s{S_SW} offen offset:{1024*j} {'nt' if st < O.nt0 else ''} lds", ("s", st),
                          [f"s_add_u32 m0, s{S_MG}, {b + 16384 + 12288*g}"] if j == 0 else []))
    return ops

def adv_src(nxt):
    if nxt <= O.lock:
        return [f"s_mov_b32 s{S_SX}, s{S_ROT}" if nxt == O.lock else f"s_add_u32 s{S_SX}, s{S_SX}, 128", "s_nop 0", "s_nop 0", f"s_mul_i32 s{S_SW}, s{S_SX}, 1536"]
    return lines(f"""
    s_add_u32 s{S_SX}, s{S_SX}, 128
    s_cmpk_eq_u32 s{S_SX}, {128 * (10 - O.lock)}
    s_cselect_b32 s{S_SX}, 0, s{S_SX}
    s_mul_i32 s{S_SW}, s{S_SX}, 1536
    """)

def setup_reads(e):
    e(f"""
    v_and_b32 v2, 15, v0
    v_lshlrev_b32 v{V_DBG}, 2, v2
    s_lshr_b32 s{S_T0}, s{S_WAVE}, 1
    s_lshl_b32 s{S_T0}, s{S_T0}, 13
    v_lshlrev_b32 v3, 7, v2
    v_add_u32 v3, s{S_T0}, v3
    v_bfe_u32 v4, v0, 1, 3
    v_lshrrev_b32 v1, 4, v0
    v_xor_b32 v4, v4, v1
    v_lshl_add_u32 v{V_RX[0]}, v4, 4, v3
    v_xor_b32 v{V_RX[0]+1}, 64, v{V_RX[0]}
    v_bfe_u32 v4, v0, 2, 2
    v_lshl_add_u32 v3, v1, 3, v4
    v_mul_u32_u24 v3, 192, v3
    v_and_b32 v4, 3, v0
    v_lshl_add_u32 v3, v4, 3, v3
    v_add_u32 v3, 16384, v3
    v_and_b32 v2, 1, v1
    s_and_b32 s{S_T0}, s{S_WAVE}, 1
    s_mul_i32 s{S_T0}, s{S_T0}, 3
    """)
    for a in range(3):
        e(f"""
        s_add_u32 s{S_T1}, s{S_T0}, {a}
        v_xor_b32 v4, s{S_T1}, v2
        v_lshl_add_u32 v{V_RW[0]+a}, v4, 5, v3
        """)
    for i in range(5): e(f"v_add_u32 v{V_RX[1]+i}, {2*SLOT}, v{V_RX[0]+i}")

def setup_repack(e):
    P, T = S_T3, S_T1
    e(f"""
    s_mul_i32 s{S_T0}, s2, 13108
    s_lshr_b32 s{P}, s{S_T0}, 16
    s_mul_i32 s{T}, s{P}, 5
    s_sub_u32 s{T}, s2, s{T}
    s_mov_b32 s{SRD_D+2}, {W_BYTES}
    s_mov_b32 s{SRD_D+3}, 0x20000
    v_lshrrev_b32 v2, 4, v0
    v_bfe_u32 v3, v0, 1, 3
    v_xor_b32 v3, v3, v2
    s_and_b32 s{S_T0}, s{S_WAVE}, 1
    s_lshl_b32 s{S_T0}, s{S_T0}, 2
    v_xor_b32 v3, s{S_T0}, v3
    v_and_b32 v4, 1, v0
    v_lshlrev_b32 v4, 4, v4
    v_mul_u32_u24 v2, 1280, v2
    v_add_u32 v2, v2, v4
    v_lshl_add_u32 v{V_RD}, v3, 5, v2
    s_lshl2_add_u32 s{S_T0}, s{P}, s{S_WAVE}
    s_mul_i32 s{S_T0}, s{S_T0}, {8*1280}
    s_lshl_b32 s{S_T2}, s{T}, 8
    s_add_u32 s{S_T0}, s{S_T0}, s{S_T2}
    v_add_u32 v{V_RD}, s{S_T0}, v{V_RD}
    v_add_u32 v{V_RD+1}, {4*1280-1024}, v{V_RD}
    s_bfe_u32 s{S_GRP}, s2, 0x10005
    s_lshl_b32 s{S_MR}, s{S_WAVE}, 11
    s_add_u32 s{S_MR}, s{S_MR}, {RPB}
    s_lshl_b32 s{T}, s{T}, 3
    s_mul_i32 s{S_T0}, s{P}, 5462
    s_lshr_b32 s{S_T0}, s{S_T0}, 16
    s_add_u32 s{S_T0}, s{S_T0}, s{T}
    s_lshl_b32 s{S_T0}, s{S_T0}, 8
    s_add_u32 s{S_T0}, s{S_T0}, {CNT_OFF + 1024}
    s_cmp_eq_u32 s{S_WAVE}, 0
    s_cselect_b32 s{S_T0}, s{S_T0}, s{SRD_H+2}
    s_cmp_lt_u32 s2, 240
    s_cselect_b32 s{S_T0}, s{S_T0}, s{SRD_H+2}
    v_lshl_add_u32 v{V_SG}, v0, 25, s{S_T0}
    s_lshl_b32 s{S_T2}, s{S_WAVE}, 1
    s_add_u32 s{T}, s{T}, s{S_T2}
    s_mul_i32 s{P}, s{P}, 5
    """)
    for u, dst in ((0, S_RP0), (1, S_RP1)):
        e(f"""
        s_add_u32 s{S_T0}, s{T}, {u}
        s_mul_i32 s{dst}, s{S_T0}, 13108
        s_lshr_b32 s{dst}, s{dst}, 16
        s_mul_i32 s{dst}, s{dst}, 235
        s_add_u32 s{dst}, s{dst}, s{S_T0}
        s_add_u32 s{dst}, s{dst}, s{P}
        s_lshl_b32 s{dst}, s{dst}, 10
        s_add_u32 s{dst}, s{dst}, {WP_OFF}
        s_cmp_lt_u32 s2, 240
        s_cselect_b32 s{dst}, s{dst}, s{SRD_H+2}
        """)
    e(f"""
    v_bfe_u32 v2, v0, 4, 1
    v_bfe_u32 v3, v0, 2, 2
    v_lshl_add_u32 v2, v2, 2, v3
    v_lshrrev_b32 v4, 4, v0
    v_lshl_add_u32 v3, v4, 3, v3
    v_lshlrev_b32 v3, 8, v3
    v_and_b32 v4, 3, v0
    v_lshl_add_u32 v3, v4, 3, v3
    v_add_u32 v3, {RPB}, v3
    v_xor_b32 v2, s{S_T2}, v2
    v_lshl_add_u32 v{V_RR0}, v2, 5, v3
    v_xor_b32 v{V_RR0+1}, 32, v{V_RR0}
    """)

def setup_p2(e):
    e(f"""
    s_and_b32 s{S_T0}, s2, 6
    s_lshr_b32 s{S_T1}, s2, 5
    s_lshl2_add_u32 s{S_R}, s{S_T0}, s{S_T1}
    s_and_b32 s{S_T0}, s2, 1
    s_bfe_u32 s{S_C}, s2, 0x20003
    s_lshl2_add_u32 s{S_C}, s{S_T0}, s{S_C}
    s_mul_i32 s{S_LW}, s{S_WAVE}, 10240
    s_lshl2_add_u32 s{S_T0}, s{S_C}, s{S_WAVE}
    s_mul_i32 s{S_T0}, s{S_T0}, {12*5120}
    s_add_u32 s{S_WB}, s{S_T0}, {WP_OFF}
    v_add_u32 v{V_L16B}, 4096, v{V_L16}
    v_and_b32 v2, 1, v0
    s_mul_i32 s{S_T0}, s{S_C}, 5
    v_lshl_add_u32 v2, v2, 2, s{S_T0}
    v_and_b32 v2, 0x38, v2
    s_add_u32 s{S_T0}, s{S_WAVE}, {4 + (CNT_OFF >> 8)}
    v_add_lshl_u32 v{V_CHA}, v2, s{S_T0}, 8
    s_mov_b32 s{SRD_O+2}, {X_BYTES}
    s_mov_b32 s{SRD_O+3}, 0x20000
    s_lshl2_add_u32 s{S_T0}, s{S_R}, s{S_WAVE}
    s_mul_i32 s{S_T1}, s{S_T0}, 49152
    v_add_u32 v2, s{S_T1}, v{V_L16}
    s_mul_i32 s{S_T0}, s{S_T0}, {16*1280}
    s_mul_i32 s{S_T1}, s{S_C}, 160
    s_add_u32 s{S_OO}, s{S_T0}, s{S_T1}
    """)
    for j in range(4):
        e(f"""
        s_add_u32 s{S_T0}, s{S_WAVE}, {j+1}
        s_and_b32 s{S_T0}, s{S_T0}, 3
        s_lshl_b32 s{S_T0}, s{S_T0}, 10
        v_add_u32 v{V2_HL+j}, s{S_T0}, v2
        """)
    e(f"""
    s_lshr_b32 s{S_T1}, s{S_F}, 2
    s_lshl3_add_u32 s{S_T0}, s{S_M}, s{S_T1}
    s_lshl_b32 s{S_T0}, s{S_T0}, 8
    s_add_u32 s{S_T0}, s{S_T0}, {CNT_OFF}
    s_cmp_eq_u32 s{S_WAVE}, 0
    s_cselect_b32 s{S_T0}, s{S_T0}, s{SRD_H+2}
    v_lshl_add_u32 v{V_SH}, v0, 25, s{S_T0}
    s_lshr_b32 s{S_T0}, s{S_R}, 1
    s_lshl3_add_u32 s{S_T0}, s{S_T0}, s{S_WAVE}
    s_lshl_b32 s{S_T0}, s{S_T0}, 8
    s_add_u32 s{S_CP}, s{S_T0}, {CNT_OFF}
    v_bfe_u32 v2, v0, 4, 1
    v_lshlrev_b32 v2, 10, v2
    v_lshrrev_b32 v3, 5, v0
    v_lshl_add_u32 v2, v3, 8, v2
    v_and_b32 v3, 15, v0
    v_lshl_add_u32 v{V_HOFF}, v3, 4, v2
    s_lshr_b32 s{S_T0}, s{S_WAVE}, 1
    s_lshl1_add_u32 s{S_T0}, s{S_M}, s{S_T0}
    s_mul_i32 s{S_T0}, s{S_T0}, 196608
    s_and_b32 s{S_T1}, s{S_WAVE}, 1
    s_lshl1_add_u32 s{S_T1}, s{S_F}, s{S_T1}
    s_mul_i32 s{S_T1}, s{S_T1}, 3
    """)
    for a in range(3):
        e(f"""
        s_add_u32 s{S_T2}, s{S_T1}, {a}
        s_and_b32 s{S_HST+a}, s{S_T2}, 1
        s_mul_i32 s{S_HST+a}, s{S_HST+a}, {512 - 2048}
        s_lshl_b32 s{S_T2}, s{S_T2}, 11
        s_add_u32 s{S_HST+a}, s{S_HST+a}, s{S_T2}
        s_add_u32 s{S_HST+a}, s{S_HST+a}, s{S_T0}
        """)
    for i in range(12): e(f"s_mov_b32 s{S_P+i}, {4096*i}")

def slot_addr(st): return (1, 0) if st % 3 == 2 else (0, (st % 3) * SLOT)
def rdB(st, ks, j, buf=None):
    buf = ks if buf is None else buf
    k, off = slot_addr(st)
    return f"ds_read_b128 {vr(V_B + buf*16 + j*4, 4)}, v{V_RX[k]+ks} offset:{off + j*2048}"
def rdA(st, ks, t):
    a, gu = t >> 1, t & 1
    k, off = slot_addr(st)
    return [f"ds_read_b64_tr_b16 {vr(V_A + ks*24 + t*4 + half*2, 2)}, v{V_RW[k]+a} offset:{off + gu*12288 + (32*ks + 4*half)*192}" for half in range(2)]
def p1_reads(st, ks):
    return [rdB(st, ks, 0)] + rdA(st, ks, 0) + [rdB(st, ks, j) for j in (1, 2, 3)] + [x for t in range(1, 6) for x in rdA(st, ks, t)]
def acc1(t, j): return V_ACC1 + (t*4 + j)*4
def mf1(ks, t, j, buf=None, first=False):
    buf = ks if buf is None else buf
    acc = vr(acc1(t, j), 4)
    return f"v_mfma_f32_16x16x32_bf16 {acc}, {vr(V_A + ks*24 + t*4, 4)}, {vr(V_B + buf*16 + j*4, 4)}, {'0' if first else acc}"

DMA_GAPS = [2, 7, 12, 17, 22, 26, 31, 35, 39, 43]

def body(e, vq, st, ops, fill, need):
    NR = O.nrest
    s0 = [mf1(0, t, j, first=(st == 0)) for t in range(6) for j in range(4)]
    s1 = [mf1(1, t, j) for t in range(6) for j in range(4)]
    mf = s1[24-NR:] + s0 + s1[:24-NR]
    rd = p1_reads(st, 0) + p1_reads(st, 1)
    last = {NR: 3, NR + 2: 5, NR + 4: 9, NR + 12: 15, NR + 24: 16 + 5 + 2 * ((24 - NR - 1) // 4)}
    at = dict(zip(DMA_GAPS, ops))
    p0 = NR if st == 0 else 0
    nrd = p0 + 1
    e(rd[:nrd])
    for g in DMA_GAPS:
        if g < p0 and g in at: emit(e, vq, at[g])
    for p in range(p0, 48):
        if p in last: e(f"s_waitcnt lgkmcnt({min(15, nrd - 1 - last[p])})")
        e(mf[p])
        if nrd < 32: e(rd[nrd]); nrd += 1
        if p in at: vq.issue(at[p].ins, at[p].tag)
        if p + 1 in at: e(at[p + 1].pre)
        for x in fill.get(p, []): emit(e, vq, x)
    vq.wait(need, "lgkmcnt(0)")
    if not O.nobar: e("s_barrier")

def place(fill, L, p0):
    L = list(L)
    for p in range(p0, 48):
        if p in (44, 45) or p + 1 in DMA_GAPS and DMA_GAPS.index(p + 1) in (0, 4, 7): continue
        room = 3 - (1 if p < 31 else 0) - (1 if p in DMA_GAPS else 0) - len(fill.get(p, []))
        nv, out = 0, []
        while L and room > 0:
            if L[0].startswith("v_"):
                if nv: break
                nv = 1
            n = 1
            if L[0].startswith("s_cmp"):
                while n < len(L) and L[n].startswith("s_cselect"): n += 1
            out += L[:n]; del L[:n]; room -= n
        if out: fill.setdefault(p, []); fill[p] = fill[p] + out
    assert not L, len(L)

def spin(e, tail, name, cmp, reload):
    e(f"{cmp}\ns_cbranch_vccnz L_{name}\nL_{name}_ok:")
    tail += lines(f"""
    L_{name}:
    s_mov_b32 s{S_SPIN}, 0
    L_{name}_1:
    {reload}
    s_add_u32 s{S_SPIN}, s{S_SPIN}, 1
    s_cmp_gt_u32 s{S_SPIN}, 20000
    s_cbranch_scc1 L_{name}_ok
    s_waitcnt vmcnt(0)
    {cmp}
    s_cbranch_vccnz L_{name}_1
    s_branch L_{name}_ok
    """)

def wd_ops(i):
    return [Op(f"buffer_load_dwordx4 {ar(20*i + 4*t, 4)}, v{V_L16 if t < 4 else V_L16B}, {srd(SRD_H)}, s{S_DS} offen offset:{1024*(t&3)} sc1",
               ("w", i), [f"s_add_u32 s{S_DS}, s{S_WB}, {5120*i}"] if t == 0 else []) for t in range(5)]
def h_loads(i):
    return [f"buffer_load_dwordx4 {vr(V2_H + (i%6)*16 + j*4, 4)}, v{V2_HL+j}, {srd(SRD_H)}, s{S_P+i} offen sc1" for j in range(4)]

def out_addr(e, V_OA, V_OB):
    e(f"""
    v_and_b32 v{V_OB}, 15, v0
    v_mul_u32_u24 v{V_OB}, 1280, v{V_OB}
    v_bfe_u32 v{V_OA}, v0, 4, 1
    v_lshl_add_u32 v{V_OA}, v{V_OA}, 5, v{V_OB}
    v_lshrrev_b32 v16, 5, v0
    v_lshl_add_u32 v{V_OA}, v16, 4, v{V_OA}
    v_lshrrev_b32 v16, 4, v0
    v_lshl_add_u32 v{V_OB}, v16, 3, v{V_OB}
    """)

def phase2_ring(e, vq):
    NB = 16
    ACC, IN = (160, 180), 200
    V_W, V_R, V_OA, V_OB = 2, 3, 14, 15
    def hload(n): return f"buffer_load_dwordx4 {vr(V2_H + (n % NB)*4, 4)}, v{V2_HL + n // 12}, {srd(SRD_H)}, s{S_P + n % 12} offen sc1"
    for n in range(O.hn): vq.issue(hload(n), ("h", n))
    e(f"""
    s_lshl_b32 s{S_T0}, s{S_WAVE}, 14
    v_lshl_add_u32 v{V_W}, v0, {dict([(128, 4), (64, 3), (32, 2)])[O.wr]}, s{S_T0}
    s_add_u32 s{S_T0}, s{S_T0}, 16384
    s_and_b32 s{S_T0}, s{S_T0}, 0xffff
    v_lshl_add_u32 v{V_R}, v0, {dict([(128, 4), (64, 3), (32, 2)])[O.wr]}, s{S_T0}
    """)
    out_addr(e, V_OA, V_OB)
    for r in range(4):
        fill = {}
        if r >= 1:
            P = ACC[(r - 1) & 1]
            if r >= 2:
                fill[3] = ["s_waitcnt lgkmcnt(0)"]
                for i in range(20): fill[4 + i] = [f"v_add_f32 v{P+i}, v{P+i}, v{IN+i}"]
            w0 = O.rw0 if r >= 2 else 8
            nw = O.wr // 32
            reg = lambda a: vr(a, nw) if nw > 1 else f"v{a}"
            for i in range(20 // nw):
                fill.setdefault(w0 + O.wstep*i, []).append(f"ds_write_b{O.wr} v{V_W}, {reg(P + nw*i)} offset:{(r-1)*5120 + i*256*nw}")
            assert w0 + O.wstep * (20 // nw - 1) < O.rbar
            fill[O.rbar] = ["s_waitcnt lgkmcnt(0)", "s_barrier"]
            for i in range(20 // nw):
                fill.setdefault(min(59, O.rbar + 1 + i // (2 if nw == 1 else 1)), []).append(f"ds_read_b{O.wr} {reg(IN + nw*i)}, v{V_R} offset:{(r-1)*5120 + i*256*nw}")
        for s in range(12):
            n = 12 * r + s
            vq.wait({("h", n), ("w", s)})
            if (O.fine and s == 0) or n == 0: stamp(e)
            for t in range(5):
                acc = vr(ACC[r & 1] + 4*t, 4)
                e(f"v_mfma_f32_16x16x32_bf16 {acc}, {ar(20*s + 4*t, 4)}, {vr(V2_H + (n % NB)*4, 4)}, {acc if s else '0'}")
                if t == 0 and n + O.hn < 48: vq.issue(hload(n + O.hn), ("h", n + O.hn))
                e(fill.get(5*s + t, []))
    stamp(e)
    P = ACC[1]
    e("s_waitcnt lgkmcnt(0)\ns_nop 2")
    for t in range(5):
        b = P + 4*t
        for h in range(2): e(f"v_pk_add_f32 {vr(b+2*h,2)}, {vr(b+2*h,2)}, {vr(IN+4*t+2*h,2)}")
        e(f"v_cvt_pk_bf16_f32 v{144+2*t}, v{b}, v{b+1}")
        e(f"v_cvt_pk_bf16_f32 v{145+2*t}, v{b+2}, v{b+3}")
        if t in (1, 3):
            r = 144 + 2 * (t - 1)
            e(f"s_nop 1\nv_permlane16_swap_b32 v{r}, v{r+2}\nv_permlane16_swap_b32 v{r+1}, v{r+3}")
            e(f"buffer_store_dwordx4 {vr(r,4)}, v{V_OA}, {srd(SRD_O)}, s{S_OO} offen offset:{32*(t-1)} {O.ostore}")
        if t == 4:
            e(f"buffer_store_dwordx2 {vr(152,2)}, v{V_OB}, {srd(SRD_O)}, s{S_OO} offen offset:128 {O.ostore}")

def kernel(e):
    tail = []
    vq = VQ(e)
    e("s_cmp_ge_u32 s2, 256\ns_cbranch_scc1 L_done")
    stamp_init(e)
    setup_x(e)
    if O.pro: stamp(e)
    ops = stage_ops(0)
    for op in ops[:4]: vq.issue(op.ins, op.tag)
    setup_w(e)
    for op in ops[4:]: emit(e, vq, op)
    if O.pro: stamp(e)
    e(f"""
    s_mov_b32 s{SRD_H+2}, {WS_BYTES}
    s_mov_b32 s{SRD_H+3}, 0x20000
    s_mov_b32 s{SRD_B+2}, 256
    s_mov_b32 s{SRD_B+3}, 0x20000
    s_lshl_b32 s{S_T0}, s{S_M}, 11
    s_add_u32 s{S_T0}, s{S_T0}, {CNT_OFF}
    s_lshl_b32 s{S_T1}, s{S_M}, 2
    s_or_b32 s{S_T2}, s{S_F}, s{S_WAVE}
    s_cmp_eq_u32 s{S_T2}, 0
    s_cselect_b32 s{S_T0}, s{S_T0}, s{SRD_H+2}
    s_cselect_b32 s{S_T1}, s{S_T1}, s{SRD_B+2}
    v_lshrrev_b32 v2, 3, v0
    v_lshlrev_b32 v2, 25, v2
    v_and_b32 v3, 7, v0
    v_lshl_add_u32 v2, v3, 8, v2
    v_lshl_add_u32 v{V_FL}, v0, 8, s{S_T1}
    v_mov_b32 v3, 0
    v_mov_b32 v{V_ONE}, 1
    v_mov_b32 v{V_CHK}, 1
    s_waitcnt lgkmcnt(0)
    """)
    vq.issue(masked(f"buffer_store_dword v3, v2, {srd(SRD_H)}, s{S_T0} offen sc1", 0xff), "zero")
    e(adv_src(1))
    setup_reads(e)
    lateq = {}
    if O.late and O.rpa >= 1:
        t = E(); setup_repack(t); L = [x.strip() for x in t.L]
        k = max(i for i, x in enumerate(L) if f"s{S_MR}," in x) + 1
        lateq[0], lateq[1] = L[:k], L[k:]
        t = E(); setup_p2(t); L = [x.strip() for x in t.L]
        k = len(L) // 2
        while L[k].startswith('s_cselect') or L[k - 1].startswith('s_cmp'): k += 1
        lateq[5], lateq[6] = L[:k], L[k:]
    else:
        setup_repack(e)
        setup_p2(e)
    if O.pro: stamp(e)
    for op in stage_ops(1): emit(e, vq, op)
    e(adv_src(2))
    rp_dma = [Op(f"buffer_load_dwordx4 v{V_RD}, {srd(SRD_D)}, 0 offen {'nt' if O.ntr else ''} lds", "rpl", [f"s_mov_b32 m0, s{S_MR}"]),
              Op(f"buffer_load_dwordx4 v{V_RD+1}, {srd(SRD_D)}, 0 offen offset:1024 {'nt' if O.ntr else ''} lds", "rpl")]
    if O.rpa < 0:
        for op in rp_dma: emit(e, vq, op)
    stamp(e)
    vq.wait({("s", 0), "zero"})
    e("s_barrier")
    if O.pro: stamp(e)
    vq.issue(masked(f"buffer_store_dword v{V_ONE}, v{V_FL}, {srd(SRD_B)}, 0 offen sc1"), "flag")
    rp_rd = [f"ds_read_b64_tr_b16 {vr(V_RT + 4*u + 2*h, 2)}, v{V_RR0+u} offset:{1024*h}" for u in range(2) for h in range(2)]
    rp_st = [Op(f"buffer_store_dwordx4 {vr(V_RT + 4*u, 4)}, v{V_L16}, {srd(SRD_H)}, s{S_RP0+u} offen sc1", "rps") for u in range(2)]
    wd = [op for i in range(12) for op in wd_ops(i)]
    def take(n):
        out = wd[:n]; del wd[:n]; return out
    a = O.rpa
    for st in range(9):
        src = adv_src(st + 3)
        fill = {44: src[:2], 45: src[2:]} if st < 7 else {}
        need = {("s", st + 1)}
        ops = stage_ops(st + 2) if st < 8 else take(O.b7)
        if O.nodma and st < 8: ops = []
        def cond(g, L, name):
            t = E(); q = VQ(t)
            t(L) if not any(isinstance(x, Op) for x in L) else [emit(t, q, x) for x in L]
            return [f"s_cmp_eq_u32 s{S_GRP}, {g}", f"s_cbranch_scc0 L_{name}{st}"] + [x.strip() for x in t.L] + [f"L_{name}{st}:"]
        chk = f"buffer_load_dword v{V_CHK}, v{V_DBG}, {srd(SRD_B)}, 0 offen sc1"
        sig = Op(masked(f"buffer_atomic_add v{V_ONE}, v{V_SG}, {srd(SRD_H)}, 0 offen sc1"), "sig")
        if O.norp: pass
        elif O.rpg == 1:
            if O.rpe and st == a - 1:
                fill.setdefault(O.rpe - 1, []).append(rp_dma[0].pre[0])
                fill.setdefault(O.rpe, []).append(Op(rp_dma[0].ins, "rpl"))
                fill.setdefault(O.rpe + 1, []).append(rp_dma[1])
            if st == a and not O.rpe:
                for op in rp_dma: emit(e, vq, op)
            if st == max(a + O.rlag - 1, 0): need.add("rpl")
            if a + O.rlag < 1: raise SystemExit("rlag too small")
            if st == a + O.rlag:
                e(rp_rd)
                fill[O.stg], fill[O.stg + 1] = [rp_st[0]], [rp_st[1]]
            if st == a + O.rlag + 1:
                fill[0] = [Op(chk, "chk")]
                need |= {"rps", "chk"}
            if st == a + O.rlag + 2:
                spin(e, tail, "zchk", f"v_cmp_ne_u32 vcc, 1, v{V_CHK}", chk)
                fill[0] = [sig]
        else:
            for g in range(2):
                if st == a + g: e(cond(g, rp_dma, "ca"))
                if st == a + g + 1:
                    e(cond(g, rp_rd, "cb"))
                    fill[O.stg] = cond(g, rp_st, "cc")
                if st == a + g + 3: fill[0] = cond(g, [sig], "cd")
            if st == a + 2:
                if O.chk0: fill[0] = [f"s_cmp_eq_u32 s{S_WAVE}, 0", "s_cbranch_scc0 L_nochk", chk, "L_nochk:"]
                else: fill[0] = [Op(chk, "chk")]; need.add("chk")
            if st == a + 3: spin(e, tail, "zchk", f"v_cmp_ne_u32 vcc, 1, v{V_CHK}", chk)
        if st == 7:
            fill[O.pg] = [Op(f"buffer_load_dword v{V_CHK}, v{V_CHA}, {srd(SRD_H)}, 0 offen sc1", "rpp")]
            need.add("rpp")
        if st == 8 and not O.norp:
            spin(e, tail, "rchk", f"v_cmp_ne_u32 vcc, 12, v{V_CHK}", f"buffer_load_dword v{V_CHK}, v{V_CHA}, {srd(SRD_H)}, 0 offen sc1")
        if st in lateq: place(fill, lateq[st], O.nrest if st == 0 else 1)
        body(e, vq, st, ops, fill, need)
        if O.fine or st == 8: stamp(e)
    NR = O.nrest
    s1 = [mf1(1, t, j) for t in range(6) for j in range(4)]
    units = [(a, jp) for a in range(3) for jp in (0, 2)]
    mf = s1[24-NR:]
    for a, jp in units:
        mf += [mf1(ks, 2*a + gu, jp + d, 2 * ks) for ks in range(2) for gu in range(2) for d in range(2)]
    rd = [rdB(9, 0, 0)] + rdA(9, 0, 0) + [rdB(9, 0, 1)] + rdA(9, 0, 1) + [rdB(9, 1, 0, 2)] + rdA(9, 1, 0) + [rdB(9, 1, 1, 2)] + rdA(9, 1, 1)
    rd += [rdB(9, 0, 2), rdB(9, 0, 3), rdB(9, 1, 2, 2), rdB(9, 1, 3, 2)]
    for t in (2, 4): rd += rdA(9, 0, t) + rdA(9, 0, t + 1) + rdA(9, 1, t) + rdA(9, 1, t + 1)
    rd_at, k = {}, 0
    for p in range(-1, 40):
        n = 2 if p < 6 else 1
        rd_at[p], k = rd[k:k+n], min(k + n, 32)
    needs = {NR: 5, NR + 4: 11, NR + 8: 15, NR + 16: 23, NR + 32: 31}
    def epi(a, jp, pk=False):
        L = []
        for d in range(2):
            g = acc1(2*a, jp + d)
            L += [f"v_max_f32 v{g+r}, 0, v{g+r}" for r in range(4)]
        for d in range(2):
            g, u = acc1(2*a, jp + d), acc1(2*a + 1, jp + d)
            if pk: L += [f"v_pk_mul_f32 {vr(g+2*h,2)}, {vr(g+2*h,2)}, {vr(u+2*h,2)}" for h in range(2)]
            else: L += [f"v_mul_f32 v{g+r}, v{g+r}, v{u+r}" for r in range(4)]
        u = acc1(2*a + 1, jp)
        for d in range(2):
            g = acc1(2*a, jp + d)
            L += [f"v_cvt_pk_bf16_f32 v{u+2*d+h}, v{g+2*h}, v{g+2*h+1}" for h in range(2)]
        L += ["s_nop 1", f"v_permlane16_swap_b32 v{u}, v{u+2}", f"v_permlane16_swap_b32 v{u+1}, v{u+3}"]
        return L + [Op(f"buffer_store_dwordx4 {vr(u,4)}, v{V_HOFF}, {srd(SRD_H)}, s{S_HST+a} offen offset:{jp*1024} {O.hstore}", "st")]
    wops = take(O.b8)
    wgaps = [int(O.w0 + k * O.wd) for k in range(len(wops))]
    issued, pend = len(rd_at[-1]), []
    e(rd_at[-1])
    for p in range(len(mf)):
        if p in needs: e(f"s_waitcnt lgkmcnt({min(15, issued - 1 - needs[p])})")
        e(mf[p])
        if p in rd_at: e(rd_at[p]); issued += len(rd_at[p])
        if p in wgaps: emit(e, vq, wops.pop(0))
        q = p - NR - 8
        if q >= 0 and q % 8 == O.elag: pend += epi(*units[q // 8])
        for x in pend[:O.en]: emit(e, vq, x)
        del pend[:O.en]
    for x in pend: emit(e, vq, x)
    stamp(e)
    e("s_nop 3")
    for x in epi(*units[5], pk=True): emit(e, vq, x)
    stamp(e)
    for x in take(O.pre): emit(e, vq, x)
    stamp(e)
    vq.wait({"st"})
    e("s_barrier")
    stamp(e)
    vq.issue(masked(f"buffer_atomic_add v{V_ONE}, v{V_SH}, {srd(SRD_H)}, 0 offen sc1"), "sigh")
    e("v_mov_b32 v2, 0")
    poll = f"buffer_load_dword v3, v2, {srd(SRD_H)}, s{S_CP} offen sc1"
    for x in take(max(0, len(wd) - O.pollat)): emit(e, vq, x)
    vq.issue(poll, "poll")
    for x in take(len(wd)): emit(e, vq, x)
    stamp(e)
    vq.wait({"poll"})
    spin(e, tail, "poll", "v_cmp_ne_u32 vcc, 4, v3", poll)
    stamp(e)
    if O.ring:
        phase2_ring(e, vq)
        stamp(e)
        stamp_flush(e, 16 << 20)
        e("L_done:\ns_endpgm")
        e(tail)
        e("L_end:")
        return
    for i in range(O.hd):
        for x in h_loads(i): vq.issue(x, ("h", i))
    V_RW0, V_RR, V_OA, V_OB = 2, 3, 14, 15
    e(f"v_add_u32 v{V_RW0}, s{S_LW}, v{V_L16}\nv_add_u32 v1, {2*SLOT}, v{V_RW0}")
    for j in range(3):
        e(f"""
        s_sub_u32 s{S_T0}, s{S_WAVE}, {j+1}
        s_and_b32 s{S_T0}, s{S_T0}, 3
        s_mul_i32 s{S_T0}, s{S_T0}, 10240
        s_add_u32 s{S_T0}, s{S_T0}, {[0, 5120, 2*SLOT][j]}
        v_add_u32 v{V_RR+j}, s{S_T0}, v{V_L16}
        """)
    e(f"""
    v_and_b32 v{V_OB}, 15, v0
    v_mul_u32_u24 v{V_OB}, 1280, v{V_OB}
    v_bfe_u32 v{V_OA}, v0, 4, 1
    v_lshl_add_u32 v{V_OA}, v{V_OA}, 5, v{V_OB}
    v_lshrrev_b32 v16, 5, v0
    v_lshl_add_u32 v{V_OA}, v16, 4, v{V_OA}
    v_lshrrev_b32 v16, 4, v0
    v_lshl_add_u32 v{V_OB}, v16, 3, v{V_OB}
    """)
    def red_write(j, t):
        va, off = (V_RW0, j * 5120) if j < 2 else (1, 0)
        return f"ds_write_b128 v{va}, {vr(V2_ACC + (j*5+t)*4, 4)} offset:{off + t*1024}"
    for s in range(12):
        vq.wait({("h", s), ("w", s)})
        if O.fine or s == 0: stamp(e)
        hl = h_loads(s + O.hd) if s + O.hd < 12 else []
        order = [(t, j) for t in range(5) for j in range(4)] if s < 11 else [(t, j) for j in range(4) for t in range(5)]
        for k, (t, j) in enumerate(order):
            acc = vr(V2_ACC + (j*5 + t)*4, 4)
            e(f"v_mfma_f32_16x16x32_bf16 {acc}, {ar(20*s + 4*t, 4)}, {vr(V2_H + (s%6)*16 + j*4, 4)}, {acc if s else '0'}")
            if k % 5 == 0 and k // 5 < len(hl): vq.issue(hl[k // 5], ("h", s + O.hd))
            if s == 11 and k >= 8: e(red_write((k - 8) // 5, (k - 8) % 5))
    for k in range(20, 23): e(red_write((k - 8) // 5, (k - 8) % 5))
    stamp(e)
    e("s_waitcnt lgkmcnt(0)\ns_barrier")
    stamp(e)
    for t in range(5):
        for j in range(3):
            e(f"ds_read_b128 {vr(64 + (t*3+j)*4, 4)}, v{V_RR+j} offset:{t*1024}")
    OWN = V2_ACC + 60
    for t in range(5):
        b = 64 + t * 12
        e(f"s_waitcnt lgkmcnt({12 - 3*t})")
        for h in range(2):
            e(f"v_pk_add_f32 {vr(b+2*h,2)}, {vr(b+2*h,2)}, {vr(b+4+2*h,2)}")
            e(f"v_pk_add_f32 {vr(OWN+t*4+2*h,2)}, {vr(OWN+t*4+2*h,2)}, {vr(b+8+2*h,2)}")
        for h in range(2):
            e(f"v_pk_add_f32 {vr(b+2*h,2)}, {vr(b+2*h,2)}, {vr(OWN+t*4+2*h,2)}")
        e(f"v_cvt_pk_bf16_f32 v{144+2*t}, v{b}, v{b+1}")
        e(f"v_cvt_pk_bf16_f32 v{145+2*t}, v{b+2}, v{b+3}")
        if t in (1, 3):
            r = 144 + 2 * (t - 1)
            e(f"s_nop 1\nv_permlane16_swap_b32 v{r}, v{r+2}\nv_permlane16_swap_b32 v{r+1}, v{r+3}")
            e(f"buffer_store_dwordx4 {vr(r,4)}, v{V_OA}, {srd(SRD_O)}, s{S_OO} offen offset:{32*(t-1)} {O.ostore}")
        if t == 4:
            e(f"buffer_store_dwordx2 {vr(152,2)}, v{V_OB}, {srd(SRD_O)}, s{S_OO} offen offset:128 {O.ostore}")
    stamp(e)
    stamp_flush(e, 16 << 20)
    e("L_done:\ns_endpgm")
    e(tail)
    e("L_end:")

def gen():
    e = E()
    e.L += ["; ReGLU FFN  out = (relu(x Wg) * (x Wu)) Wd   S=2048 D=640 F=1536 bf16, one launch",
            f"; @launch grid=(256,1,1) block=(256,1,1) lds={LDS_BYTES}",
            '.amdgcn_target "amdgcn-amd-amdhsa--gfx950"', ".text", f".globl {KNAME}", ".p2align 8",
            f".type {KNAME},@function", f"{KNAME}:"]
    kernel(e)
    e.L += ['.section .rodata,"a"', ".p2align 6", f".amdhsa_kernel {KNAME}",
            "  .amdhsa_next_free_vgpr 496", "  .amdhsa_next_free_sgpr 96", "  .amdhsa_accum_offset 256",
            "  .amdhsa_group_segment_fixed_size 0", "  .amdhsa_kernarg_size 56", "  .amdhsa_user_sgpr_count 2",
            "  .amdhsa_user_sgpr_kernarg_segment_ptr 1", "  .amdhsa_system_sgpr_workgroup_id_x 1", ".end_amdhsa_kernel"]
    return e.text()

if __name__ == "__main__":
    out = sys.argv[1]
    for a in sys.argv[2:]:
        k, _, v = a.partition("=")
        cur = getattr(O, k)
        setattr(O, k, (v == "1") if isinstance(cur, bool) else type(cur)(v))
    open(out, "w").write(gen())
```

```python
import sys

S, D, F = 2048, 640, 1536
X_BYTES = S * D * 2
W_BYTES = D * F * 2
KNAME = "standalone__glu_gated_reglu__prompt_kernel"
CNT_OFF = (8 << 20) + 1966080
WP_OFF = 8 << 20
WS_BYTES = 32 << 20

class Opt:
    stamps = False
    smin = False
    m162 = True
    nt0 = 0
    ntr = False
    fine = False
    pro = False
    cyc = False
    G = 10
    hstore = "sc1"
    ostore = ""
    b7 = 10
    b8 = 6
    pre = 12
    pollat = 10
    cpre = True
    cpn = 32
    elag = 2
    hd = 3
    w0 = 1.0
    wd = 2.0
    en = 3
    rpa = 1
    nrest = 10
    norp = False
    lock = 0
    rpe = 0
    wr = 64
    wstep = 2
    t5 = True
    t6 = True
    t2 = True
    sites = ""
    tlb = 0
    pal = False
    warm = False
    slowf = 0
    slowm = 0x3084
    emu = False
    oob = 0
    pret = False
    halft = 0
    snake = True
    t3 = False
    late = False
    ring = True
    hn = 8
    rw0 = 24
    rbar = 46
    rpg = 1
    chk0 = True
    ex1 = True
    rlag = 1
    stg = 46
    pg = 0
    nodma = False
    nobar = False
O = Opt()

class E:
    def __init__(self): self.L = []
    def __call__(self, s):
        if isinstance(s, (list, tuple)):
            for x in s: self(x)
            return
        for ln in s.split("\n"):
            ln = ln.strip()
            if ln: self.L.append(ln if ln.endswith(":") else "    " + ln)
    def text(self): return "\n".join(self.L) + "\n"

def vr(a, n): return f"v[{a}:{a+n-1}]"
def ar(a, n): return f"a[{a}:{a+n-1}]"
def lines(s): return [x.strip() for x in s.strip().split("\n") if x.strip()]

SRD_X, SRD_G, SRD_U, SRD_D, SRD_O, SRD_H, SRD_B = 4, 8, 12, 16, 20, 24, 28
def srd(n): return f"s[{n}:{n+3}]"
S_WAVE = 32
S_M, S_F, S_R, S_C = 33, 34, 35, 36
S_SX, S_SW = 37, 38
S_MX, S_MG = 39, 40
S_GRP = 42
S_ROT = 43
S_SM, S_SO = 84, 94
S_SW2 = 44
S_MR = 41
S_T0, S_T1, S_T2, S_T3 = 47, 48, 49, 46
S_HST = 50
S_LW = 55
S_OO = 56
S_CP = 58
S_DS = 59
S_RP0, S_RP1 = 61, 62
S_P = 64
S_WB = 78
S_PC = 82
S_ST, S_STI = 90, 92
S_SPIN = 93

SLOT = 40960
LDS_BYTES = 163840
RPB = 3 * SLOT

V_L16, V_L16B = 6, 7
V_DBG, V_ONE = 8, 13
V_RD, V_RR0, V_RT = 9, 11, 16
V_FL, V_SG, V_SH = 24, 25, 26
V_ST = 31
V_DX, V_DG = 40, 44
V_RX, V_RW = (32, 48), (34, 50)
V_HOFF, V_CHK, V_CHA = 57, 58, 59
V2_HL = 60
V_A, V_B, V_ACC1 = 64, 112, 160
V2_H, V2_ACC = 64, 160

def clk(): return "s_memtime" if O.cyc else "s_memrealtime"
def stamp_init(e):
    if not O.stamps: return
    e(f"{clk()} s[{S_ST}:{S_ST+1}]\ns_mov_b32 s{S_STI}, 1\ns_waitcnt lgkmcnt(0)\nv_mov_b32 v{V_ST}, s{S_ST}")
def stamp(e, force=False):
    if not O.stamps or (O.smin and not force): return
    e(f"""{clk()} s[{S_ST}:{S_ST+1}]
    v_cmp_eq_u32 vcc, s{S_STI}, v0
    s_add_u32 s{S_STI}, s{S_STI}, 1
    s_waitcnt lgkmcnt(0)
    v_mov_b32 v{V_ST-1}, s{S_ST}
    v_cndmask_b32 v{V_ST}, v{V_ST}, v{V_ST-1}, vcc""")
def stamp_flush(e, base):
    if not O.stamps: return
    e("s_waitcnt vmcnt(0)")
    stamp(e, True)
    e(f"""s_lshl_b32 s{S_ST}, s2, 2
    s_add_u32 s{S_ST}, s{S_ST}, s{S_WAVE}
    s_lshl_b32 s{S_ST}, s{S_ST}, 8
    s_add_u32 s{S_ST}, s{S_ST}, {base}
    v_lshlrev_b32 v{V_ST-1}, 2, v0
    buffer_store_dword v{V_ST}, v{V_ST-1}, {srd(SRD_H)}, s{S_ST} offen""")

class VQ:
    def __init__(self, e): self.e, self.q = e, []
    def issue(self, op, tag): self.e(op); self.q.append(tag)
    def count(self, tags):
        idx = [i for i, t in enumerate(self.q) if t in tags]
        assert all(t in self.q for t in tags) or O.nodma, tags
        n = len(self.q) - 1 - max(idx, default=-1)
        assert n < 64
        return n
    def wait(self, tags, extra=""): self.e(f"s_waitcnt vmcnt({self.count(tags)}) {extra}".strip())

class Op:
    def __init__(self, ins, tag, pre=()): self.ins, self.tag, self.pre = ins, tag, list(pre)
def masked(ins, mask=1):
    return f"s_mov_b64 exec, {mask}\n{ins}\ns_mov_b64 exec, -1" if O.ex1 else ins
def emit(e, vq, x):
    if isinstance(x, Op):
        e(x.pre)
        if x.pre and " m0," in x.pre[-1]: e("s_nop 0")
        vq.issue(x.ins, x.tag)
    else: e(x)

def tile1():
    if O.m162:
        return f"""s_lshr_b32 s{S_M}, s2, 4
    s_and_b32 s{S_T0}, s2, 7
    s_bfe_u32 s{S_T1}, s2, 0x10003
    s_lshl1_add_u32 s{S_F}, s{S_T0}, s{S_T1}"""
    return f"""s_and_b32 s{S_T0}, s2, 4
    s_lshl_b32 s{S_T0}, s{S_T0}, 1
    s_lshr_b32 s{S_T1}, s2, 5
    s_add_u32 s{S_M}, s{S_T0}, s{S_T1}
    s_and_b32 s{S_T0}, s2, 3
    s_bfe_u32 s{S_T1}, s2, 0x20003
    s_lshl2_add_u32 s{S_F}, s{S_T0}, s{S_T1}"""

def slow_m():
    if not O.slowf: return f"s_add_u32 s{S_T0}, s{S_M}, s{S_T0}"
    pre = f"s_and_b32 s{S_T2}, s{S_M}, 1\ns_mul_i32 s{S_T2}, s{S_T2}, 5\n" if O.slowf == 2 else f"s_mov_b32 s{S_T2}, 0\n"
    return pre + f"s_bitcmp1_b32 {O.slowm}, s{S_F}\ns_cselect_b32 s{S_T2}, s{S_T2}, s{S_M}\ns_add_u32 s{S_T0}, s{S_T2}, s{S_T0}"

def setup_x(e):
    e(f"""
    s_load_dwordx2 s[{SRD_X}:{SRD_X+1}], s[0:1], 0
    s_load_dwordx2 s[{SRD_G}:{SRD_G+1}], s[0:1], 8
    s_load_dwordx2 s[{SRD_U}:{SRD_U+1}], s[0:1], 16
    """)
    if O.cpre:
        e(f"""
        s_getpc_b64 s[{S_PC}:{S_PC+1}]
        L_pc:
        s_bfe_u32 s{S_T0}, s2, 0x20003
        s_mul_i32 s{S_T0}, s{S_T0}, {O.cpn}
        v_add_lshl_u32 v2, v0, s{S_T0}, 7
        v_min_u32 v2, L_end - L_pc - 4, v2
        v_mov_b32 v3, 0
        v_lshl_add_u64 v[2:3], v[2:3], 0, s[{S_PC}:{S_PC+1}]
        v_cmp_gt_u32 vcc, {O.cpn}, v0
        s_and_saveexec_b64 s[{S_PC+4}:{S_PC+5}], vcc
        s_cbranch_execz L_nocp
        global_load_dword v5, v[2:3], off
        L_nocp:
        s_mov_b64 exec, -1
        """)
    if O.lock: O.G = 10 - O.lock
    mg = (65536 + O.G - 1) // O.G
    e(f"""
    v_lshrrev_b32 v1, 6, v0
    v_and_b32 v0, 63, v0
    v_readfirstlane_b32 s{S_WAVE}, v1
    {tile1()}
    {f"s_mul_i32 s{S_T1}, s{S_T1}, {O.G // 2}{chr(10)}{slow_m()}{chr(10)}s_add_u32 s{S_T0}, s{S_T0}, s{S_T1}" if O.m162 and (O.G == 10 or O.lock) else f"s_add_u32 s{S_T0}, s{S_M}, s{S_F}"}
    s_mul_i32 s{S_T1}, s{S_T0}, {mg}
    s_lshr_b32 s{S_T1}, s{S_T1}, 16
    s_mul_i32 s{S_T1}, s{S_T1}, {O.G}
    s_sub_u32 s{S_T0}, s{S_T0}, s{S_T1}
    """)
    if O.lock: e(f"s_lshl_b32 s{S_ROT}, s{S_T0}, 7\ns_movk_i32 s{S_SX}, {128 * (10 - O.lock)}")
    elif 10 % O.G == 0: e(f"s_mul_i32 s{S_SX}, s{S_T0}, {1280 // O.G}")
    else: e(f"s_mul_i32 s{S_T0}, s{S_T0}, {10 * mg}\ns_lshr_b32 s{S_SX}, s{S_T0}, 16\ns_lshl_b32 s{S_SX}, s{S_SX}, 7")
    e(f"""
    v_lshrrev_b32 v2, 3, v0
    v_mul_u32_u24 v3, 1280, v2
    v_lshrrev_b32 v4, 4, v0
    v_and_b32 v1, 7, v0
    v_xor_b32 v4, v4, v1
    v_lshl_add_u32 v{V_DX}, v4, 4, v3
    v_xor_b32 v{V_DX+1}, 64, v{V_DX}
    v_add_u32 v{V_DX+1}, {10240-1024}, v{V_DX+1}
    v_add_u32 v{V_DX+2}, {2*(10240-1024)}, v{V_DX}
    v_add_u32 v{V_DX+3}, {2*(10240-1024)}, v{V_DX+1}
    s_lshl2_add_u32 s{S_T0}, s{S_M}, s{S_WAVE}
    s_mov_b32 s{SRD_X+2}, 40960
    s_mul_i32 s{S_T0}, s{S_T0}, s{SRD_X+2}
    s_mov_b32 s{SRD_X+3}, 0x20000
    s_lshl_b32 s{S_MX}, s{S_WAVE}, 12
    s_mov_b32 m0, s{S_MX}
    s_waitcnt lgkmcnt(0)
    """)
    if O.pret:
        e(f"""
        s_mov_b32 s{SRD_G+2}, 4
        s_mov_b32 s{SRD_G+3}, 0x20000
        s_mov_b32 s{SRD_U+2}, 4
        s_mov_b32 s{SRD_U+3}, 0x20000
        s_mov_b64 exec, 1
        buffer_load_dword v28, off, {srd(SRD_G)}, 0
        buffer_load_dword v29, off, {srd(SRD_U)}, 0
        s_mov_b64 exec, -1
        """)
    e(f"""
    s_add_u32 s{SRD_X}, s{SRD_X}, s{S_T0}
    s_addc_u32 s{SRD_X+1}, s{SRD_X+1}, 0
    """)

def setup_w(e):
    e(f"""
    s_load_dwordx2 s[{SRD_D}:{SRD_D+1}], s[0:1], 24
    s_load_dwordx2 s[{SRD_O}:{SRD_O+1}], s[0:1], 32
    s_load_dwordx2 s[{SRD_B}:{SRD_B+1}], s[0:1], 40
    s_load_dwordx2 s[{SRD_H}:{SRD_H+1}], s[0:1], 48
    s_cmp_lt_u32 s{S_WAVE}, 2
    s_cselect_b32 s{SRD_G}, s{SRD_G}, s{SRD_U}
    s_cselect_b32 s{SRD_G+1}, s{SRD_G+1}, s{SRD_U+1}
    s_and_b32 s{S_T2}, s{S_WAVE}, 1
    s_mul_i32 s{S_T0}, s{S_T2}, {16*3072}
    s_mul_i32 s{S_T1}, s{S_F}, 192
    s_add_u32 s{S_T1}, s{S_T1}, s{S_T0}
    s_add_u32 s{SRD_G}, s{SRD_G}, s{S_T1}
    s_addc_u32 s{SRD_G+1}, s{SRD_G+1}, 0
    s_sub_u32 s{SRD_G+2}, {W_BYTES}, s{S_T1}
    s_mov_b32 s{SRD_G+3}, 0x20000
    s_mul_i32 s{S_SW}, s{S_SX}, 1536
    s_add_u32 s{S_SW2}, s{S_SW}, {32*3072}
    s_lshr_b32 s{S_T1}, s{S_WAVE}, 1
    s_lshl2_add_u32 s{S_MG}, s{S_T1}, s{S_T2}
    s_mul_i32 s{S_MG}, s{S_MG}, 3072
    s_movk_i32 s{S_T0}, 2880
    v_lshlrev_b32 v{V_L16}, 4, v0
    v_mul_u32_u24 v2, 5462, v0
    """)
    for j in range(3):
        if j: e(f"v_add_u32 v2, {64*5462}, v2")
        e(f"""
        v_lshrrev_b32 v3, 16, v2
        v_lshrrev_b32 v4, 14, v2
        v_and_b32 v4, 32, v4
        v_xor_b32 v4, v4, v{V_L16}
        v_mad_u32_u24 v{V_DG+j}, v3, s{S_T0}, v4
        """)
        if O.emu:
            e(f"""
            v_add_u32 v4, {1024*j}, v{V_DG+j}
            v_and_b32 v4, 127, v4
            v_mul_u32_u24 v3, 3072, v3
            v_add_u32 v4, v4, v3
            v_subrev_u32 v{37+j}, {1024*j}, v4
            s_and_b32 s{SRD_G}, s{SRD_G}, 0xffffff80
            """)

def stage_ops(st):
    b = (st % 3) * SLOT
    ops = []
    for j in range(4):
        ops.append(Op(f"buffer_load_dwordx4 v{V_DX+j}, {srd(SRD_X)}, s{S_SX} offen offset:{1024*j} lds", ("s", st),
                      [f"s_add_u32 m0, s{S_MX}, {b}"] if j == 0 else []))
    for g in range(2):
        for j in range(3):
            ops.append(Op(f"buffer_load_dwordx4 v{V_DG+j}, {srd(SRD_G)}, s{(S_SW, S_SW2)[g]} offen offset:{1024*j} lds", ("s", st) if g or st else ("s0a",),
                          [f"s_add_u32 m0, s{S_MG}, {b + 16384 + 6144*g}"] if j == 0 else []))
    return ops

def adv_src(nxt):
    if nxt <= O.lock:
        return [f"s_mov_b32 s{S_SX}, s{S_ROT}" if nxt == O.lock else f"s_add_u32 s{S_SX}, s{S_SX}, 128", "s_nop 0", "s_nop 0", f"s_mul_i32 s{S_SW}, s{S_SX}, 1536"]
    return lines(f"""
    s_add_u32 s{S_SX}, s{S_SX}, 128
    s_cmpk_eq_u32 s{S_SX}, {128 * (10 - O.lock)}
    s_cselect_b32 s{S_SX}, 0, s{S_SX}
    s_mul_i32 s{S_SW}, s{S_SX}, 1536
    s_add_u32 s{S_SW2}, s{S_SW}, {32*3072}
    """)

def setup_reads(e):
    e(f"""
    v_and_b32 v2, 15, v0
    v_lshlrev_b32 v{V_DBG}, 2, v2
    s_lshr_b32 s{S_T0}, s{S_WAVE}, 1
    s_lshl_b32 s{S_T0}, s{S_T0}, 13
    v_lshlrev_b32 v3, 7, v2
    v_add_u32 v3, s{S_T0}, v3
    v_bfe_u32 v4, v0, 1, 3
    v_lshrrev_b32 v1, 4, v0
    v_xor_b32 v4, v4, v1
    v_lshl_add_u32 v{V_RX[0]}, v4, 4, v3
    v_xor_b32 v{V_RX[0]+1}, 64, v{V_RX[0]}
    v_bfe_u32 v4, v0, 2, 2
    v_lshl_add_u32 v3, v1, 3, v4
    v_mul_u32_u24 v3, 192, v3
    v_and_b32 v4, 3, v0
    v_lshl_add_u32 v3, v4, 3, v3
    v_add_u32 v3, 16384, v3
    v_and_b32 v2, 1, v1
    s_and_b32 s{S_T0}, s{S_WAVE}, 1
    s_mul_i32 s{S_T0}, s{S_T0}, 3
    """)
    for a in range(3):
        e(f"""
        s_add_u32 s{S_T1}, s{S_T0}, {a}
        v_xor_b32 v4, s{S_T1}, v2
        v_lshl_add_u32 v{V_RW[0]+a}, v4, 5, v3
        """)
    for i in range(5): e(f"v_add_u32 v{V_RX[1]+i}, {2*SLOT}, v{V_RX[0]+i}")

def setup_repack(e):
    P, T = S_T3, S_T1
    e(f"""
    s_mul_i32 s{S_T0}, s2, 13108
    s_lshr_b32 s{P}, s{S_T0}, 16
    s_mul_i32 s{T}, s{P}, 5
    s_sub_u32 s{T}, s2, s{T}
    s_mov_b32 s{SRD_D+2}, {W_BYTES}
    s_mov_b32 s{SRD_D+3}, 0x20000
    v_lshrrev_b32 v2, 4, v0
    v_bfe_u32 v3, v0, 1, 3
    v_xor_b32 v3, v3, v2
    s_and_b32 s{S_T0}, s{S_WAVE}, 1
    s_lshl_b32 s{S_T0}, s{S_T0}, 2
    v_xor_b32 v3, s{S_T0}, v3
    v_and_b32 v4, 1, v0
    v_lshlrev_b32 v4, 4, v4
    v_mul_u32_u24 v2, 1280, v2
    v_add_u32 v2, v2, v4
    v_lshl_add_u32 v{V_RD}, v3, 5, v2
    s_lshl2_add_u32 s{S_T0}, s{P}, s{S_WAVE}
    s_mul_i32 s{S_T0}, s{S_T0}, {8*1280}
    s_lshl_b32 s{S_T2}, s{T}, 8
    s_add_u32 s{S_T0}, s{S_T0}, s{S_T2}
    v_add_u32 v{V_RD}, s{S_T0}, v{V_RD}
    v_add_u32 v{V_RD+1}, {4*1280-1024}, v{V_RD}
    s_bfe_u32 s{S_GRP}, s2, 0x10005
    s_lshl_b32 s{S_MR}, s{S_WAVE}, 11
    s_add_u32 s{S_MR}, s{S_MR}, {RPB}
    s_lshl_b32 s{T}, s{T}, 3
    s_mul_i32 s{S_T0}, s{P}, 5462
    s_lshr_b32 s{S_T0}, s{S_T0}, 16
    s_add_u32 s{S_T0}, s{S_T0}, s{T}
    s_lshl_b32 s{S_T0}, s{S_T0}, 8
    s_add_u32 s{S_T0}, s{S_T0}, {CNT_OFF + 1024}
    s_cmp_eq_u32 s{S_WAVE}, 0
    s_cselect_b32 s{S_T0}, s{S_T0}, s{SRD_H+2}
    s_cmp_lt_u32 s2, 240
    s_cselect_b32 s{S_T0}, s{S_T0}, s{SRD_H+2}
    v_lshl_add_u32 v{V_SG}, v0, 25, s{S_T0}
    s_lshl_b32 s{S_T2}, s{S_WAVE}, 1
    s_add_u32 s{T}, s{T}, s{S_T2}
    s_mul_i32 s{P}, s{P}, 5
    """)
    for u, dst in ((0, S_RP0), (1, S_RP1)):
        e(f"""
        s_add_u32 s{S_T0}, s{T}, {u}
        s_mul_i32 s{dst}, s{S_T0}, 13108
        s_lshr_b32 s{dst}, s{dst}, 16
        s_mul_i32 s{dst}, s{dst}, 235
        s_add_u32 s{dst}, s{dst}, s{S_T0}
        s_add_u32 s{dst}, s{dst}, s{P}
        s_lshl_b32 s{dst}, s{dst}, 10
        s_add_u32 s{dst}, s{dst}, {WP_OFF}
        s_cmp_lt_u32 s2, 240
        s_cselect_b32 s{dst}, s{dst}, s{SRD_H+2}
        """)
    e(f"""
    v_bfe_u32 v2, v0, 4, 1
    v_bfe_u32 v3, v0, 2, 2
    v_lshl_add_u32 v2, v2, 2, v3
    v_lshrrev_b32 v4, 4, v0
    v_lshl_add_u32 v3, v4, 3, v3
    v_lshlrev_b32 v3, 8, v3
    v_and_b32 v4, 3, v0
    v_lshl_add_u32 v3, v4, 3, v3
    v_add_u32 v3, {RPB}, v3
    v_xor_b32 v2, s{S_T2}, v2
    v_lshl_add_u32 v{V_RR0}, v2, 5, v3
    v_xor_b32 v{V_RR0+1}, 32, v{V_RR0}
    """)

def setup_p2(e):
    e(f"""
    s_and_b32 s{S_T0}, s2, 6
    s_lshr_b32 s{S_T1}, s2, 5
    s_lshl2_add_u32 s{S_R}, s{S_T0}, s{S_T1}
    s_and_b32 s{S_T0}, s2, 1
    s_bfe_u32 s{S_C}, s2, 0x20003
    s_lshl2_add_u32 s{S_C}, s{S_T0}, s{S_C}
    s_mul_i32 s{S_LW}, s{S_WAVE}, 10240
    s_lshl2_add_u32 s{S_T0}, s{S_C}, s{S_WAVE}
    s_mul_i32 s{S_T0}, s{S_T0}, {12*5120}
    s_add_u32 s{S_WB}, s{S_T0}, {WP_OFF}
    v_add_u32 v{V_L16B}, 4096, v{V_L16}
    v_and_b32 v2, 1, v0
    s_mul_i32 s{S_T0}, s{S_C}, 5
    v_lshl_add_u32 v2, v2, 2, s{S_T0}
    v_and_b32 v2, 0x38, v2
    s_add_u32 s{S_T0}, s{S_WAVE}, {4 + (CNT_OFF >> 8)}
    v_add_lshl_u32 v{V_CHA}, v2, s{S_T0}, 8
    s_mov_b32 s{SRD_O+2}, {X_BYTES}
    s_mov_b32 s{SRD_O+3}, 0x20000
    s_lshl2_add_u32 s{S_T0}, s{S_R}, s{S_WAVE}
    s_mul_i32 s{S_T1}, s{S_T0}, 49152
    s_mul_i32 s{S_T2}, s{S_R}, 26
    s_lshr_b32 s{S_T2}, s{S_T2}, 8
    s_lshl_b32 s{S_T2}, s{S_T2}, 17
    s_add_u32 s{S_T1}, s{S_T1}, s{S_T2}
    v_add_u32 v2, s{S_T1}, v{V_L16}
    s_mul_i32 s{S_T0}, s{S_T0}, {16*1280}
    s_mul_i32 s{S_T1}, s{S_C}, 160
    s_add_u32 s{S_OO}, s{S_T0}, s{S_T1}
    """)
    for j in range(4):
        e(f"""
        s_add_u32 s{S_T0}, s{S_WAVE}, {j+1}
        s_and_b32 s{S_T0}, s{S_T0}, 3
        s_lshl_b32 s{S_T0}, s{S_T0}, 10
        v_add_u32 v{V2_HL+j}, s{S_T0}, v2
        """)
    e(f"""
    s_lshr_b32 s{S_T1}, s{S_F}, 2
    s_lshl3_add_u32 s{S_T0}, s{S_M}, s{S_T1}
    s_lshl_b32 s{S_T0}, s{S_T0}, 8
    s_add_u32 s{S_T0}, s{S_T0}, {CNT_OFF}
    s_cmp_eq_u32 s{S_WAVE}, 0
    s_cselect_b32 s{S_T0}, s{S_T0}, s{SRD_H+2}
    v_lshl_add_u32 v{V_SH}, v0, 25, s{S_T0}
    s_lshr_b32 s{S_T0}, s{S_R}, 1
    s_lshl3_add_u32 s{S_T0}, s{S_T0}, s{S_WAVE}
    s_lshl_b32 s{S_T0}, s{S_T0}, 8
    s_add_u32 s{S_CP}, s{S_T0}, {CNT_OFF}
    v_bfe_u32 v2, v0, 4, 1
    v_lshlrev_b32 v2, 10, v2
    v_lshrrev_b32 v3, 5, v0
    v_lshl_add_u32 v2, v3, 8, v2
    v_and_b32 v3, 15, v0
    v_lshl_add_u32 v{V_HOFF}, v3, 4, v2
    s_lshr_b32 s{S_T0}, s{S_WAVE}, 1
    s_lshl1_add_u32 s{S_T0}, s{S_M}, s{S_T0}
    s_mul_i32 s{S_T2}, s{S_T0}, 26
    s_lshr_b32 s{S_T2}, s{S_T2}, 8
    s_lshl_b32 s{S_T2}, s{S_T2}, 17
    s_mul_i32 s{S_T0}, s{S_T0}, 196608
    s_add_u32 s{S_T0}, s{S_T0}, s{S_T2}
    s_and_b32 s{S_T1}, s{S_WAVE}, 1
    s_lshl1_add_u32 s{S_T1}, s{S_F}, s{S_T1}
    s_mul_i32 s{S_T1}, s{S_T1}, 3
    """)
    for a in range(3):
        e(f"""
        s_add_u32 s{S_T2}, s{S_T1}, {a}
        s_and_b32 s{S_HST+a}, s{S_T2}, 1
        s_mul_i32 s{S_HST+a}, s{S_HST+a}, {512 - 2048}
        s_lshl_b32 s{S_T2}, s{S_T2}, 11
        s_add_u32 s{S_HST+a}, s{S_HST+a}, s{S_T2}
        s_add_u32 s{S_HST+a}, s{S_HST+a}, s{S_T0}
        """)
    for i in range(12): e(f"s_mov_b32 s{S_P+i}, {4096*i}")

def slot_addr(st): return (1, 0) if st % 3 == 2 else (0, (st % 3) * SLOT)
def rdB(st, ks, j, buf=None):
    buf = ks if buf is None else buf
    k, off = slot_addr(st)
    return f"ds_read_b128 {vr(V_B + buf*16 + j*4, 4)}, v{V_RX[k]+ks} offset:{off + j*2048}"
def rdA(st, ks, t):
    a, gu = t >> 1, t & 1
    k, off = slot_addr(st)
    return [f"ds_read_b64_tr_b16 {vr(V_A + ks*24 + t*4 + half*2, 2)}, v{V_RW[k]+a} offset:{off + gu*12288 + (32*ks + 4*half)*192}" for half in range(2)]
def p1_reads(st, ks):
    return [rdB(st, ks, 0)] + rdA(st, ks, 0) + [rdB(st, ks, j) for j in (1, 2, 3)] + [x for t in range(1, 6) for x in rdA(st, ks, t)]
def acc1(t, j): return V_ACC1 + (t*4 + j)*4
def mf1(ks, t, j, buf=None, first=False):
    buf = ks if buf is None else buf
    acc = vr(acc1(t, j), 4)
    return f"v_mfma_f32_16x16x32_bf16 {acc}, {vr(V_A + ks*24 + t*4, 4)}, {vr(V_B + buf*16 + j*4, 4)}, {'0' if first else acc}"

def jord(t): return range(3, -1, -1) if O.snake and t & 1 else range(4)
DMA_GAPS = [2, 7, 12, 17, 22, 26, 31, 35, 39, 43]

def body(e, vq, st, ops, fill, need, gaps):
    NR = O.nrest
    s0 = [mf1(0, t, j, first=(st == 0)) for t in range(6) for j in jord(t)]
    s1 = [mf1(1, t, j) for t in range(6) for j in jord(t)]
    mf = s1[24-NR:] + s0 + s1[:24-NR]
    rd = p1_reads(st, 0) + p1_reads(st, 1)
    last = {NR: 3, NR + 2: 5, NR + 4: 9, NR + 12: 15, NR + 24: 16 + 5 + 2 * ((24 - NR - 1) // 4)}
    at = dict(zip(gaps, ops))
    p0 = NR if st == 0 else 0
    nrd = p0 + 1
    e(rd[:nrd])
    for g in gaps:
        if g < p0 and g in at: emit(e, vq, at[g])
    for p in range(p0, 48):
        if p in last: e(f"s_waitcnt lgkmcnt({min(15, nrd - 1 - last[p])})")
        e(mf[p])
        if nrd < 32: e(rd[nrd]); nrd += 1
        if p in at: vq.issue(at[p].ins, at[p].tag)
        if p + 1 in at: e(at[p + 1].pre)
        for x in fill.get(p, []): emit(e, vq, x)
    vq.wait(need, "lgkmcnt(0)")
    if not O.nobar: e("s_barrier")

def place(fill, L, p0):
    L = list(L)
    for p in range(p0, 48):
        if p in (44, 45) or p + 1 in DMA_GAPS and DMA_GAPS.index(p + 1) in (0, 4, 7): continue
        room = 3 - (1 if p < 31 else 0) - (1 if p in DMA_GAPS else 0) - len(fill.get(p, []))
        nv, out = 0, []
        while L and room > 0:
            if L[0].startswith("v_"):
                if nv: break
                nv = 1
            n = 1
            if L[0].startswith("s_cmp"):
                while n < len(L) and L[n].startswith("s_cselect"): n += 1
            out += L[:n]; del L[:n]; room -= n
        if out: fill.setdefault(p, []); fill[p] = fill[p] + out
    assert not L, len(L)

def spin(e, tail, name, cmp, reload):
    e(f"{cmp}\ns_cbranch_vccnz L_{name}\nL_{name}_ok:")
    tail += lines(f"""
    L_{name}:
    s_mov_b32 s{S_SPIN}, 0
    L_{name}_1:
    {reload}
    s_add_u32 s{S_SPIN}, s{S_SPIN}, 1
    s_cmp_gt_u32 s{S_SPIN}, 20000
    s_cbranch_scc1 L_{name}_ok
    s_waitcnt vmcnt(0)
    {cmp}
    s_cbranch_vccnz L_{name}_1
    s_branch L_{name}_ok
    """)

def wd_ops(i):
    return [Op(f"buffer_load_dwordx4 {ar(20*i + 4*t, 4)}, v{V_L16 if t < 4 else V_L16B}, {srd(SRD_H)}, s{S_DS} offen offset:{1024*(t&3)} sc1",
               ("w", i), [f"s_add_u32 s{S_DS}, s{S_WB}, {5120*i}"] if t == 0 else []) for t in range(5)]
def h_loads(i):
    return [f"buffer_load_dwordx4 {vr(V2_H + (i%6)*16 + j*4, 4)}, v{V2_HL+j}, {srd(SRD_H)}, s{S_P+i} offen sc1" for j in range(4)]

def out_addr(e, V_OA, V_OB):
    e(f"""
    v_and_b32 v{V_OB}, 15, v0
    v_mul_u32_u24 v{V_OB}, 1280, v{V_OB}
    v_bfe_u32 v{V_OA}, v0, 4, 1
    v_lshl_add_u32 v{V_OA}, v{V_OA}, 5, v{V_OB}
    v_lshrrev_b32 v16, 5, v0
    v_lshl_add_u32 v{V_OA}, v16, 4, v{V_OA}
    v_lshrrev_b32 v16, 4, v0
    v_lshl_add_u32 v{V_OB}, v16, 3, v{V_OB}
    """)

def phase2_ring(e, vq):
    NB = 16
    ACC, IN = (160, 180), 200
    V_W, V_R, V_OA, V_OB = 2, 3, 14, 15
    def hload(n): return f"buffer_load_dwordx4 {vr(V2_H + (n % NB)*4, 4)}, v{V2_HL + n // 12}, {srd(SRD_H)}, s{S_P + n % 12} offen sc1"
    for n in range(O.hn): vq.issue(hload(n), ("h", n))
    e(f"""
    s_lshl_b32 s{S_T0}, s{S_WAVE}, 14
    v_lshl_add_u32 v{V_W}, v0, {dict([(128, 4), (64, 3), (32, 2)])[O.wr]}, s{S_T0}
    s_add_u32 s{S_T0}, s{S_T0}, 16384
    s_and_b32 s{S_T0}, s{S_T0}, 0xffff
    v_lshl_add_u32 v{V_R}, v0, {dict([(128, 4), (64, 3), (32, 2)])[O.wr]}, s{S_T0}
    """)
    out_addr(e, V_OA, V_OB)
    for r in range(4):
        fill = {}
        if r >= 1:
            P = ACC[(r - 1) & 1]
            if r >= 2:
                fill[3] = ["s_waitcnt lgkmcnt(0)"]
                for i in range(20): fill[4 + i] = [f"v_add_f32 v{P+i}, v{P+i}, v{IN+i}"]
            w0 = O.rw0 if r >= 2 else 8
            nw = O.wr // 32
            reg = lambda a: vr(a, nw) if nw > 1 else f"v{a}"
            for i in range(20 // nw):
                fill.setdefault(w0 + O.wstep*i, []).append(f"ds_write_b{O.wr} v{V_W}, {reg(P + nw*i)} offset:{(r-1)*5120 + i*256*nw}")
            assert w0 + O.wstep * (20 // nw - 1) < O.rbar
            fill[O.rbar] = ["s_waitcnt lgkmcnt(0)", "s_barrier"]
            for i in range(20 // nw):
                fill.setdefault(min(59, O.rbar + 1 + i // (2 if nw == 1 else 1)), []).append(f"ds_read_b{O.wr} {reg(IN + nw*i)}, v{V_R} offset:{(r-1)*5120 + i*256*nw}")
        for s in range(12):
            n = 12 * r + s
            vq.wait({("h", n), ("w", s)})
            if (O.fine and s == 0) or n == 0: stamp(e)
            for t in range(5):
                acc = vr(ACC[r & 1] + 4*t, 4)
                e(f"v_mfma_f32_16x16x32_bf16 {acc}, {ar(20*s + 4*t, 4)}, {vr(V2_H + (n % NB)*4, 4)}, {acc if s else '0'}")
                if t == 0 and n + O.hn < 48: vq.issue(hload(n + O.hn), ("h", n + O.hn))
                e(fill.get(5*s + t, []))
    P = ACC[1]
    if O.t3:
        stamp(e)
        def fin(t):
            b = P + 4*t
            return [f"v_add_f32 v{b+i}, v{b+i}, v{IN+4*t+i}" for i in range(4)] + \
                   [f"v_cvt_pk_bf16_f32 v{144+2*t}, v{b}, v{b+1}", f"v_cvt_pk_bf16_f32 v{145+2*t}, v{b+2}, v{b+3}"]
        def st4(r, off):
            return [f"v_permlane16_swap_b32 v{r}, v{r+2}", f"v_permlane16_swap_b32 v{r+1}, v{r+3}",
                    f"buffer_store_dwordx4 {vr(r,4)}, v{V_OA}, {srd(SRD_O)}, s{S_OO} offen offset:{off} {O.ostore}"]
        e("s_waitcnt lgkmcnt(0)\ns_nop 2")
        e(fin(0) + fin(1) + fin(2)[:2] + st4(144, 0) + fin(2)[2:] + fin(3) + fin(4)[:2] + st4(148, 64) + fin(4)[2:])
        e(f"buffer_store_dwordx2 {vr(152,2)}, v{V_OB}, {srd(SRD_O)}, s{S_OO} offen offset:128 {O.ostore}")
        return
    stamp(e)
    e("s_waitcnt lgkmcnt(0)\ns_nop 2")
    for t in range(5):
        b = P + 4*t
        for h in range(2): e(f"v_pk_add_f32 {vr(b+2*h,2)}, {vr(b+2*h,2)}, {vr(IN+4*t+2*h,2)}")
        e(f"v_cvt_pk_bf16_f32 v{144+2*t}, v{b}, v{b+1}")
        e(f"v_cvt_pk_bf16_f32 v{145+2*t}, v{b+2}, v{b+3}")
        if t in (1, 3):
            r = 144 + 2 * (t - 1)
            e(f"s_nop 1\nv_permlane16_swap_b32 v{r}, v{r+2}\nv_permlane16_swap_b32 v{r+1}, v{r+3}")
            e(f"buffer_store_dwordx4 {vr(r,4)}, v{V_OA}, {srd(SRD_O)}, s{S_OO} offen offset:{32*(t-1)} {O.ostore}")
        if t == 4:
            e(f"buffer_store_dwordx2 {vr(152,2)}, v{V_OB}, {srd(SRD_O)}, s{S_OO} offen offset:128 {O.ostore}")

def kernel(e):
    tail = []
    vq = VQ(e)
    e("s_cmp_ge_u32 s2, 256\ns_cbranch_scc1 L_done")
    stamp_init(e)
    setup_x(e)
    if O.pro: stamp(e)
    ops = stage_ops(0)
    for op in ops[:4]: vq.issue(op.ins, op.tag)
    setup_w(e)
    for op in ops[4:]: emit(e, vq, op)
    if O.halft == 2:
        stamp(e)
        for n in (9, 6, 3, 0): e(f"s_waitcnt vmcnt({n})"); stamp(e)
    if O.halft == 1:
        vq.wait({("s0a",)}); e("s_barrier"); stamp(e)
        vq.wait({("s", 0)}); e("s_barrier"); stamp(e)
    if O.pro: stamp(e)
    e(f"""
    s_mov_b32 s{SRD_H+2}, {WS_BYTES}
    s_mov_b32 s{SRD_H+3}, 0x20000
    s_mov_b32 s{SRD_B+2}, 256
    s_mov_b32 s{SRD_B+3}, 0x20000
    s_lshl_b32 s{S_T0}, s{S_M}, 11
    s_add_u32 s{S_T0}, s{S_T0}, {CNT_OFF}
    s_lshl_b32 s{S_T1}, s{S_M}, 2
    s_or_b32 s{S_T2}, s{S_F}, s{S_WAVE}
    s_cmp_eq_u32 s{S_T2}, 0
    s_cselect_b32 s{S_T0}, s{S_T0}, s{SRD_H+2}
    s_cselect_b32 s{S_T1}, s{S_T1}, s{SRD_B+2}
    v_lshrrev_b32 v2, 3, v0
    v_lshlrev_b32 v2, 25, v2
    v_and_b32 v3, 7, v0
    v_lshl_add_u32 v2, v3, 8, v2
    v_lshl_add_u32 v{V_FL}, v0, 8, s{S_T1}
    v_mov_b32 v3, 0
    v_mov_b32 v{V_ONE}, 1
    v_mov_b32 v{V_CHK}, 1
    s_waitcnt lgkmcnt(0)
    """)
    vq.issue(masked(f"buffer_store_dword v3, v2, {srd(SRD_H)}, s{S_T0} offen sc1", 0xff), "zero")
    if O.tlb & 1:
        e(f"""
        s_mov_b32 s{SRD_D+2}, {W_BYTES}
        s_mov_b32 s{SRD_D+3}, 0x20000
        v_min_u32 v2, 4, v0
        v_lshlrev_b32 v2, 21, v2
        v_add_u32 v2, {(2 << 20) - 128}, v2
        v_mov_b32 v4, 128
        """)
        vq.issue(masked(f"buffer_load_dword v27, v2, {srd(SRD_H)}, 0 offen", 0x1f), "tl")
        vq.issue(masked(f"buffer_load_dword v28, v4, {srd(SRD_D)}, 0 offen"), "tl")
        vq.issue(masked(f"buffer_load_dword v29, v4, {srd(SRD_B)}, 0 offen"), "tl")
    if O.warm:
        e(f"""
        s_mov_b64 exec, 0
        s_cmp_eq_u32 s{S_WAVE}, 1
        s_cbranch_scc1 L_warm0
        s_cmp_eq_u32 s{S_WAVE}, 2
        s_cbranch_scc1 L_warm1
        L_warm_ret:
        s_mov_b64 exec, -1
        """)
    e(adv_src(1))
    setup_reads(e)
    lateq = {}
    if O.late and O.rpa >= 1:
        t = E(); setup_repack(t); L = [x.strip() for x in t.L]
        k = max(i for i, x in enumerate(L) if f"s{S_MR}," in x) + 1
        lateq[0], lateq[1] = L[:k], L[k:]
        t = E(); setup_p2(t); L = [x.strip() for x in t.L]
        k = len(L) // 2
        while L[k].startswith('s_cselect') or L[k - 1].startswith('s_cmp'): k += 1
        lateq[5], lateq[6] = L[:k], L[k:]
    else:
        setup_repack(e)
        setup_p2(e)
    if O.pro: stamp(e)
    sites = O.sites.split("/") if O.sites else []
    if sites:
        e(f"s_bfe_u32 s{S_T0}, s2, 0x20003\ns_mul_i32 s{S_T0}, s{S_T0}, {len(sites)}\ns_lshr_b32 s{S_T0}, s{S_T0}, 2\ns_add_u32 s{S_T1}, s{S_MR}, 8192")
        for k in range(len(sites)):
            e(f"s_cmp_eq_u32 s{S_T0}, {k}\ns_cselect_b32 s{S_SM+k}, s{S_MR}, s{S_T1}\ns_cselect_b32 s{S_SO+k}, 0, s{SRD_D+2}")
    def site_ops(k):
        return [Op(f"buffer_load_dwordx4 v{V_RD}, {srd(SRD_D)}, s{S_SO+k} offen lds", "rpl", [f"s_mov_b32 m0, s{S_SM+k}"]),
                Op(f"buffer_load_dwordx4 v{V_RD+1}, {srd(SRD_D)}, s{S_SO+k} offen offset:1024 lds", "rpl")]
    if O.pal: e("s_branch L_pg1\n.p2align 12\nL_pg1:")
    for op in stage_ops(1): emit(e, vq, op)
    e(adv_src(2))
    if "P" in sites:
        for op in site_ops(sites.index("P")): emit(e, vq, op)
    rp_dma = [Op(f"buffer_load_dwordx4 v{V_RD}, {srd(SRD_D)}, 0 offen {'nt' if O.ntr else ''} lds", "rpl", [f"s_mov_b32 m0, s{S_MR}"]),
              Op(f"buffer_load_dwordx4 v{V_RD+1}, {srd(SRD_D)}, 0 offen offset:1024 {'nt' if O.ntr else ''} lds", "rpl")]
    if O.rpa < 0:
        for op in rp_dma: emit(e, vq, op)
    stamp(e)
    vq.wait({("s", 0), "zero"})
    e("s_barrier")
    if O.pro: stamp(e)
    if O.oob & 1: e(f"s_mov_b32 s{SRD_X+2}, 0\ns_mov_b32 s{SRD_G+2}, 0\ns_mov_b32 s{SRD_U+2}, 0")
    if O.oob & 2: e(f"s_mov_b32 s{S_WB}, s{SRD_H+2}")
    vq.issue(masked(f"buffer_store_dword v{V_ONE}, v{V_FL}, {srd(SRD_B)}, 0 offen sc1"), "flag")
    rp_rd = [f"ds_read_b64_tr_b16 {vr(V_RT + 4*u + 2*h, 2)}, v{V_RR0+u} offset:{1024*h}" for u in range(2) for h in range(2)]
    rp_st = [Op(f"buffer_store_dwordx4 {vr(V_RT + 4*u, 4)}, v{V_L16}, {srd(SRD_H)}, s{S_RP0+u} offen sc1", "rps") for u in range(2)]
    wd = [op for i in range(12) for op in wd_ops(i)]
    def take(n):
        out = wd[:n]; del wd[:n]; return out
    a = O.rpa
    for st in range(9):
        src = adv_src(st + 3)
        fill = {44: src[:2], 45: src[2:4], 46: src[4:]} if st < 7 else {}
        need = {("s", st + 1)}
        ops = stage_ops(st + 2) if st < 8 else take(O.b7)
        if O.nodma and st < 8: ops = []
        def cond(g, L, name):
            t = E(); q = VQ(t)
            t(L) if not any(isinstance(x, Op) for x in L) else [emit(t, q, x) for x in L]
            return [f"s_cmp_eq_u32 s{S_GRP}, {g}", f"s_cbranch_scc0 L_{name}{st}"] + [x.strip() for x in t.L] + [f"L_{name}{st}:"]
        chk = f"buffer_load_dword v{V_CHK}, v{V_DBG}, {srd(SRD_B)}, 0 offen sc1"
        sig = Op(masked(f"buffer_atomic_add v{V_ONE}, v{V_SG}, {srd(SRD_H)}, 0 offen sc1"), "sig")
        if O.norp: pass
        elif O.rpg == 1:
            if O.rpe and st == a - 1:
                fill.setdefault(O.rpe - 1, []).append(rp_dma[0].pre[0])
                fill.setdefault(O.rpe, []).append(Op(rp_dma[0].ins, "rpl"))
                fill.setdefault(O.rpe + 1, []).append(rp_dma[1])
            for k, sname in enumerate(sites):
                if sname == "T" and st == a:
                    for op in site_ops(k): emit(e, vq, op)
                if sname.isdigit() and st == a - 1:
                    g = int(sname)
                    nxt = min(x for x in DMA_GAPS + [99] if x > g)
                    L = site_ops(k)
                    if nxt != 99 and not ops[DMA_GAPS.index(nxt)].pre:
                        j = max(i for i in range(DMA_GAPS.index(nxt)) if ops[i].pre)
                        L.append(ops[j].pre[0])
                    fill.setdefault(g, []).extend(L)
            if st == a and not O.rpe and not sites:
                for op in rp_dma: emit(e, vq, op)
            if st == max(a + O.rlag - 1, 0): need.add("rpl")
            if a + O.rlag < 1: raise SystemExit("rlag too small")
            if st == a + O.rlag:
                e(rp_rd)
                fill[O.stg] = fill.get(O.stg, []) + [rp_st[0]]; fill[O.stg + 1] = [rp_st[1]]
                if O.t6: fill[0] = [Op(chk, "chk")]
            if st == a + O.rlag + 1:
                if not O.t6: fill[0] = [Op(chk, "chk")]
                need |= {"rps", "chk"}
            if st == a + O.rlag + 2:
                spin(e, tail, "zchk", f"v_cmp_ne_u32 vcc, 1, v{V_CHK}", chk)
                fill[0] = [sig]
        else:
            for g in range(2):
                if st == a + g: e(cond(g, rp_dma, "ca"))
                if st == a + g + 1:
                    e(cond(g, rp_rd, "cb"))
                    fill[O.stg] = cond(g, rp_st, "cc")
                if st == a + g + 3: fill[0] = cond(g, [sig], "cd")
            if st == a + 2:
                if O.chk0: fill[0] = [f"s_cmp_eq_u32 s{S_WAVE}, 0", "s_cbranch_scc0 L_nochk", chk, "L_nochk:"]
                else: fill[0] = [Op(chk, "chk")]; need.add("chk")
            if st == a + 3: spin(e, tail, "zchk", f"v_cmp_ne_u32 vcc, 1, v{V_CHK}", chk)
        if st == 7:
            fill[O.pg] = [Op(f"buffer_load_dword v{V_CHK}, v{V_CHA}, {srd(SRD_H)}, 0 offen sc1", "rpp")]
            if not O.t5: need.add("rpp")
        gaps = DMA_GAPS
        if st == 8 and not O.norp:
            t = E() if O.t5 else e
            if O.t5: t(f"s_waitcnt vmcnt({vq.count({'rpp'})})")
            spin(t, tail, "rchk", f"v_cmp_ne_u32 vcc, 12, v{V_CHK}", f"buffer_load_dword v{V_CHK}, v{V_CHA}, {srd(SRD_H)}, 0 offen sc1")
            if O.t5:
                fill[8] = [x.strip() for x in t.L]
                gaps = [10 + (36 * k) // len(ops) for k in range(len(ops))]
        if st in lateq: place(fill, lateq[st], O.nrest if st == 0 else 1)
        body(e, vq, st, ops, fill, need, gaps)
        if O.fine or st == 8: stamp(e)
    NR = O.nrest
    s1 = [mf1(1, t, j) for t in range(6) for j in jord(t)]
    units = [(a, jp) for a in range(3) for jp in (0, 2)]
    mf = s1[24-NR:]
    for a, jp in units:
        mf += [mf1(ks, 2*a + gu, jp + d, 2 * ks) for ks in range(2) for gu in range(2) for d in range(2)]
    rd = [rdB(9, 0, 0)] + rdA(9, 0, 0) + [rdB(9, 0, 1)] + rdA(9, 0, 1) + [rdB(9, 1, 0, 2)] + rdA(9, 1, 0) + [rdB(9, 1, 1, 2)] + rdA(9, 1, 1)
    rd += [rdB(9, 0, 2), rdB(9, 0, 3), rdB(9, 1, 2, 2), rdB(9, 1, 3, 2)]
    for t in (2, 4): rd += rdA(9, 0, t) + rdA(9, 0, t + 1) + rdA(9, 1, t) + rdA(9, 1, t + 1)
    rd_at, k = {}, 0
    for p in range(-1, 40):
        n = 2 if p < 6 else 1
        rd_at[p], k = rd[k:k+n], min(k + n, 32)
    needs = {NR: 5, NR + 4: 11, NR + 8: 15, NR + 16: 23, NR + 32: 31}
    def epi(a, jp, pk=False):
        L = []
        for d in range(2):
            g = acc1(2*a, jp + d)
            L += [f"v_max_f32 v{g+r}, 0, v{g+r}" for r in range(4)]
        for d in range(2):
            g, u = acc1(2*a, jp + d), acc1(2*a + 1, jp + d)
            if pk: L += [f"v_pk_mul_f32 {vr(g+2*h,2)}, {vr(g+2*h,2)}, {vr(u+2*h,2)}" for h in range(2)]
            else: L += [f"v_mul_f32 v{g+r}, v{g+r}, v{u+r}" for r in range(4)]
        u = acc1(2*a + 1, jp)
        for d in range(2):
            g = acc1(2*a, jp + d)
            L += [f"v_cvt_pk_bf16_f32 v{u+2*d+h}, v{g+2*h}, v{g+2*h+1}" for h in range(2)]
        L += ["s_nop 1", f"v_permlane16_swap_b32 v{u}, v{u+2}", f"v_permlane16_swap_b32 v{u+1}, v{u+3}"]
        return L + [Op(f"buffer_store_dwordx4 {vr(u,4)}, v{V_HOFF}, {srd(SRD_H)}, s{S_HST+a} offen offset:{jp*1024} {O.hstore}", "st")]
    wops = take(O.b8)
    wgaps = [int(O.w0 + k * O.wd) for k in range(len(wops))]
    issued, pend = len(rd_at[-1]), []
    e(rd_at[-1])
    for p in range(len(mf)):
        if p in needs: e(f"s_waitcnt lgkmcnt({min(15, issued - 1 - needs[p])})")
        e(mf[p])
        if p in rd_at: e(rd_at[p]); issued += len(rd_at[p])
        if p in wgaps: emit(e, vq, wops.pop(0))
        q = p - NR - 8
        if q >= 0 and q % 8 == O.elag:
            L = epi(*units[q // 8])
            if O.t2:
                c = L[-8:-4]
                L = L[:-8] + [c[0], c[2], c[1], c[3], "GAP", L[-3], L[-2], L[-1]]
            pend += L
        k = 0
        while pend and k < O.en:
            x = pend.pop(0)
            if x == "GAP":
                if k: break
                continue
            emit(e, vq, x); k += 1
    for x in pend: emit(e, vq, "s_nop 0" if x == "GAP" else x)
    stamp(e)
    e("s_nop 3")
    for x in epi(*units[5], pk=True): emit(e, vq, x)
    stamp(e)
    for x in take(O.pre): emit(e, vq, x)
    stamp(e)
    vq.wait({"st"})
    e("s_barrier")
    stamp(e)
    vq.issue(masked(f"buffer_atomic_add v{V_ONE}, v{V_SH}, {srd(SRD_H)}, 0 offen sc1"), "sigh")
    e("v_mov_b32 v2, 0")
    poll = f"buffer_load_dword v3, v2, {srd(SRD_H)}, s{S_CP} offen sc1"
    for x in take(max(0, len(wd) - O.pollat)): emit(e, vq, x)
    vq.issue(poll, "poll")
    for x in take(len(wd)): emit(e, vq, x)
    stamp(e)
    if O.pal: e("s_branch L_pg2\n.p2align 12\nL_pg2:")
    vq.wait({"poll"})
    spin(e, tail, "poll", "v_cmp_ne_u32 vcc, 4, v3", poll)
    stamp(e)
    if O.ring:
        phase2_ring(e, vq)
        stamp(e)
        stamp_flush(e, 16 << 20)
        e("L_done:\ns_endpgm")
        e(tail)
        e("L_end:")
        return
    for i in range(O.hd):
        for x in h_loads(i): vq.issue(x, ("h", i))
    V_RW0, V_RR, V_OA, V_OB = 2, 3, 14, 15
    e(f"v_add_u32 v{V_RW0}, s{S_LW}, v{V_L16}\nv_add_u32 v1, {2*SLOT}, v{V_RW0}")
    for j in range(3):
        e(f"""
        s_sub_u32 s{S_T0}, s{S_WAVE}, {j+1}
        s_and_b32 s{S_T0}, s{S_T0}, 3
        s_mul_i32 s{S_T0}, s{S_T0}, 10240
        s_add_u32 s{S_T0}, s{S_T0}, {[0, 5120, 2*SLOT][j]}
        v_add_u32 v{V_RR+j}, s{S_T0}, v{V_L16}
        """)
    e(f"""
    v_and_b32 v{V_OB}, 15, v0
    v_mul_u32_u24 v{V_OB}, 1280, v{V_OB}
    v_bfe_u32 v{V_OA}, v0, 4, 1
    v_lshl_add_u32 v{V_OA}, v{V_OA}, 5, v{V_OB}
    v_lshrrev_b32 v16, 5, v0
    v_lshl_add_u32 v{V_OA}, v16, 4, v{V_OA}
    v_lshrrev_b32 v16, 4, v0
    v_lshl_add_u32 v{V_OB}, v16, 3, v{V_OB}
    """)
    def red_write(j, t):
        va, off = (V_RW0, j * 5120) if j < 2 else (1, 0)
        return f"ds_write_b128 v{va}, {vr(V2_ACC + (j*5+t)*4, 4)} offset:{off + t*1024}"
    for s in range(12):
        vq.wait({("h", s), ("w", s)})
        if O.fine or s == 0: stamp(e)
        hl = h_loads(s + O.hd) if s + O.hd < 12 else []
        order = [(t, j) for t in range(5) for j in range(4)] if s < 11 else [(t, j) for j in range(4) for t in range(5)]
        for k, (t, j) in enumerate(order):
            acc = vr(V2_ACC + (j*5 + t)*4, 4)
            e(f"v_mfma_f32_16x16x32_bf16 {acc}, {ar(20*s + 4*t, 4)}, {vr(V2_H + (s%6)*16 + j*4, 4)}, {acc if s else '0'}")
            if k % 5 == 0 and k // 5 < len(hl): vq.issue(hl[k // 5], ("h", s + O.hd))
            if s == 11 and k >= 8: e(red_write((k - 8) // 5, (k - 8) % 5))
    for k in range(20, 23): e(red_write((k - 8) // 5, (k - 8) % 5))
    stamp(e)
    e("s_waitcnt lgkmcnt(0)\ns_barrier")
    stamp(e)
    for t in range(5):
        for j in range(3):
            e(f"ds_read_b128 {vr(64 + (t*3+j)*4, 4)}, v{V_RR+j} offset:{t*1024}")
    OWN = V2_ACC + 60
    for t in range(5):
        b = 64 + t * 12
        e(f"s_waitcnt lgkmcnt({12 - 3*t})")
        for h in range(2):
            e(f"v_pk_add_f32 {vr(b+2*h,2)}, {vr(b+2*h,2)}, {vr(b+4+2*h,2)}")
            e(f"v_pk_add_f32 {vr(OWN+t*4+2*h,2)}, {vr(OWN+t*4+2*h,2)}, {vr(b+8+2*h,2)}")
        for h in range(2):
            e(f"v_pk_add_f32 {vr(b+2*h,2)}, {vr(b+2*h,2)}, {vr(OWN+t*4+2*h,2)}")
        e(f"v_cvt_pk_bf16_f32 v{144+2*t}, v{b}, v{b+1}")
        e(f"v_cvt_pk_bf16_f32 v{145+2*t}, v{b+2}, v{b+3}")
        if t in (1, 3):
            r = 144 + 2 * (t - 1)
            e(f"s_nop 1\nv_permlane16_swap_b32 v{r}, v{r+2}\nv_permlane16_swap_b32 v{r+1}, v{r+3}")
            e(f"buffer_store_dwordx4 {vr(r,4)}, v{V_OA}, {srd(SRD_O)}, s{S_OO} offen offset:{32*(t-1)} {O.ostore}")
        if t == 4:
            e(f"buffer_store_dwordx2 {vr(152,2)}, v{V_OB}, {srd(SRD_O)}, s{S_OO} offen offset:128 {O.ostore}")
    stamp(e)
    stamp_flush(e, 16 << 20)
    e("L_done:\ns_endpgm")
    e(tail)
    e("L_end:")

HEADER = """
"""

def gen():
    e = E()
    e.L += HEADER.strip().split("\n") + [
            f"; @launch grid=(256,1,1) block=(256,1,1) lds={LDS_BYTES}",
            '.amdgcn_target "amdgcn-amd-amdhsa--gfx950"', ".text", f".globl {KNAME}"] + ([".p2align 12"] if O.pal else []) + [".p2align 8",
            f".type {KNAME},@function", f"{KNAME}:"]
    kernel(e)
    e.L += ['.section .rodata,"a"', ".p2align 6", f".amdhsa_kernel {KNAME}",
            "  .amdhsa_next_free_vgpr 496", "  .amdhsa_next_free_sgpr 100", "  .amdhsa_accum_offset 256",
            "  .amdhsa_group_segment_fixed_size 0", "  .amdhsa_float_denorm_mode_32 3", "  .amdhsa_kernarg_size 56", "  .amdhsa_user_sgpr_count 2",
            "  .amdhsa_user_sgpr_kernarg_segment_ptr 1", "  .amdhsa_system_sgpr_workgroup_id_x 1", ".end_amdhsa_kernel"]
    return add_warm_stubs(e.text()) if O.warm else e.text()

def add_warm_stubs(txt):
    import subprocess, re, tempfile, os
    L = txt.split("\n")
    for k in range(2):
        T = list(L)
        for j in range(k, 2): T.insert(T.index("L_done:"), f"L_warm{j}:")
        with tempfile.TemporaryDirectory() as d:
            open(d + "/a.s", "w").write("\n".join(T))
            subprocess.run(["clang", "-x", "assembler", "-target", "amdgcn-amd-amdhsa", "-mcpu=gfx950", "-c", "-g", d + "/a.s", "-o", d + "/a.o"], check=True)
            dis = subprocess.run(["llvm-objdump", "-d", "-l", "--mcpu=gfx950", d + "/a.o"], capture_output=True, text=True).stdout
        line, addr = None, {}
        for l in dis.split("\n"):
            m = re.match(r"; .*a\.s:(\d+)", l)
            if m: line = int(m.group(1)); continue
            m = re.search(r"// ([0-9A-F]{12}):", l)
            if m and line is not None and line not in addr: addr[line] = int(m.group(1), 16)
        p1 = T.index("L_pg1:") + 1 if "L_pg1:" in T else None
        base = addr[p1 + 1] if p1 else 0x1000 - 0x300
        target = base + 0x1000 * (k + 1)
        ln = min(n for n, a in addr.items() if a >= target and n > (p1 or 0))
        i = ln - 1
        while "v_mfma" not in L[i - 1]: i += 1
        L[i:i] = [f"L_warm{k}:", "    s_cbranch_execz L_warm_ret"]
    return "\n".join(L)

if __name__ == "__main__":
    out = sys.argv[1]
    for a in sys.argv[2:]:
        k, _, v = a.partition("=")
        cur = getattr(O, k)
        setattr(O, k, (v == "1") if isinstance(cur, bool) else type(cur)(v))
    open(out, "w").write(gen())
```

```python
import sys

S, D, F = 2048, 640, 1536
X_BYTES = S * D * 2
W_BYTES = D * F * 2
KNAME = "standalone__glu_gated_reglu__prompt_kernel"
CNT_OFF = (8 << 20) + 1966080
WP_OFF = 8 << 20
WS_BYTES = 32 << 20

class Opt:
    stamps = False
    smin = False
    m162 = True
    nt0 = 0
    ntr = False
    fine = False
    pro = False
    cyc = False
    G = 10
    hstore = "sc1"
    ostore = ""
    b7 = 10
    b8 = 6
    pre = 12
    pollat = 10
    cpre = True
    cpn = 32
    elag = 2
    hd = 3
    w0 = 1.0
    wd = 2.0
    en = 3
    rpa = 1
    nrest = 10
    norp = False
    lock = 0
    rpe = 0
    wr = 64
    wstep = 2
    t5 = True
    t6 = True
    t2 = True
    sites = ""
    tlb = 0
    pal = False
    warm = False
    slowf = 0
    slowm = 0x3084
    emu = False
    oob = 0
    pret = False
    halft = 0
    snake = True
    wg9 = ""
    casc = ""
    cg0 = 2
    jit = 0
    pair = 1
    dtab = ""
    z240 = False
    t3 = False
    late = False
    ring = True
    hn = 8
    rw0 = 24
    rbar = 46
    rpg = 1
    chk0 = True
    ex1 = True
    rlag = 1
    stg = 46
    pg = 0
    nodma = False
    nobar = False
O = Opt()

class E:
    def __init__(self): self.L = []
    def __call__(self, s):
        if isinstance(s, (list, tuple)):
            for x in s: self(x)
            return
        for ln in s.split("\n"):
            ln = ln.strip()
            if ln: self.L.append(ln if ln.endswith(":") else "    " + ln)
    def text(self): return "\n".join(self.L) + "\n"

def vr(a, n): return f"v[{a}:{a+n-1}]"
def ar(a, n): return f"a[{a}:{a+n-1}]"
def lines(s): return [x.strip() for x in s.strip().split("\n") if x.strip()]

SRD_X, SRD_G, SRD_U, SRD_D, SRD_O, SRD_H, SRD_B = 4, 8, 12, 16, 20, 24, 28
def srd(n): return f"s[{n}:{n+3}]"
S_WAVE = 32
S_M, S_F, S_R, S_C = 33, 34, 35, 36
S_SX, S_SW = 37, 38
S_MX, S_MG = 39, 40
S_GRP = 42
S_ROT = 43
S_SM, S_SO = 84, 94
S_SW2 = 44
S_MR = 41
S_T0, S_T1, S_T2, S_T3 = 47, 48, 49, 46
S_HST = 50
S_LW = 55
S_OO = 56
S_CP = 58
S_DS = 59
S_RP0, S_RP1 = 61, 62
S_P = 64
S_WB = 78
S_PC = 82
S_ST, S_STI = 90, 92
S_SPIN = 93

SLOT = 40960
LDS_BYTES = 163840
RPB = 3 * SLOT

V_L16, V_L16B = 6, 7
V_DBG, V_ONE = 8, 13
V_RD, V_RR0, V_RT = 9, 11, 16
V_FL, V_SG, V_SH = 24, 25, 26
V_ST = 31
V_DX, V_DG = 40, 44
V_RX, V_RW = (32, 48), (34, 50)
V_HOFF, V_CHK, V_CHA = 57, 58, 59
V2_HL = 60
V_A, V_B, V_ACC1 = 64, 112, 160
V2_H, V2_ACC = 64, 160

def clk(): return "s_memtime" if O.cyc else "s_memrealtime"
def stamp_init(e):
    if not O.stamps: return
    e(f"{clk()} s[{S_ST}:{S_ST+1}]\ns_mov_b32 s{S_STI}, 1\ns_waitcnt lgkmcnt(0)\nv_mov_b32 v{V_ST}, s{S_ST}")
def stamp(e, force=False):
    if not O.stamps or (O.smin and not force): return
    e(f"""{clk()} s[{S_ST}:{S_ST+1}]
    v_cmp_eq_u32 vcc, s{S_STI}, v0
    s_add_u32 s{S_STI}, s{S_STI}, 1
    s_waitcnt lgkmcnt(0)
    v_mov_b32 v{V_ST-1}, s{S_ST}
    v_cndmask_b32 v{V_ST}, v{V_ST}, v{V_ST-1}, vcc""")
def stamp_flush(e, base):
    if not O.stamps: return
    e("s_waitcnt vmcnt(0)")
    stamp(e, True)
    e(f"""s_lshl_b32 s{S_ST}, s2, 2
    s_add_u32 s{S_ST}, s{S_ST}, s{S_WAVE}
    s_lshl_b32 s{S_ST}, s{S_ST}, 8
    s_add_u32 s{S_ST}, s{S_ST}, {base}
    v_lshlrev_b32 v{V_ST-1}, 2, v0
    buffer_store_dword v{V_ST}, v{V_ST-1}, {srd(SRD_H)}, s{S_ST} offen""")

class VQ:
    def __init__(self, e): self.e, self.q = e, []
    def issue(self, op, tag): self.e(op); self.q.append(tag)
    def count(self, tags):
        idx = [i for i, t in enumerate(self.q) if t in tags]
        assert all(t in self.q for t in tags) or O.nodma, tags
        n = len(self.q) - 1 - max(idx, default=-1)
        assert n < 64
        return n
    def wait(self, tags, extra=""): self.e(f"s_waitcnt vmcnt({self.count(tags)}) {extra}".strip())

class Op:
    def __init__(self, ins, tag, pre=()): self.ins, self.tag, self.pre = ins, tag, list(pre)
def masked(ins, mask=1):
    return f"s_mov_b64 exec, {mask}\n{ins}\ns_mov_b64 exec, -1" if O.ex1 else ins
def emit(e, vq, x):
    if isinstance(x, Op):
        e(x.pre)
        if x.pre and " m0," in x.pre[-1]: e("s_nop 0")
        vq.issue(x.ins, x.tag)
    else: e(x)

def nib(L): return sum(v << (4 * i) for i, v in enumerate(L))
def tile1():
    if O.pair:
        d = [int(c) for c in O.dtab] if O.dtab else [5, O.pair, 6, O.pair, 5, 5, O.pair, O.pair]
        return f"""s_lshr_b32 s{S_M}, s2, 4
    s_and_b32 s{S_T0}, s2, 7
    s_lshl_b32 s{S_T2}, s{S_T0}, 2
    s_bitcmp1_b32 s2, 3
    s_mov_b32 s{S_F}, {nib([0, 2, 4, 7, 8, 10, 12, 13]):#x}
    s_cselect_b32 s{S_F}, {nib([1, 3, 5, 6, 9, 11, 14, 15]):#x}, s{S_F}
    s_cselect_b32 s{S_T1}, {nib(d):#x}, 0
    s_lshr_b32 s{S_F}, s{S_F}, s{S_T2}
    s_and_b32 s{S_F}, s{S_F}, 15
    s_lshr_b32 s{S_T1}, s{S_T1}, s{S_T2}
    s_and_b32 s{S_T1}, s{S_T1}, 15"""
    if O.m162:
        return f"""s_lshr_b32 s{S_M}, s2, 4
    s_and_b32 s{S_T0}, s2, 7
    s_bfe_u32 s{S_T1}, s2, 0x10003
    s_lshl1_add_u32 s{S_F}, s{S_T0}, s{S_T1}"""
    return f"""s_and_b32 s{S_T0}, s2, 4
    s_lshl_b32 s{S_T0}, s{S_T0}, 1
    s_lshr_b32 s{S_T1}, s2, 5
    s_add_u32 s{S_M}, s{S_T0}, s{S_T1}
    s_and_b32 s{S_T0}, s2, 3
    s_bfe_u32 s{S_T1}, s2, 0x20003
    s_lshl2_add_u32 s{S_F}, s{S_T0}, s{S_T1}"""

def slow_m():
    if not O.slowf: return f"s_add_u32 s{S_T0}, s{S_M}, s{S_T0}"
    pre = f"s_and_b32 s{S_T2}, s{S_M}, 1\ns_mul_i32 s{S_T2}, s{S_T2}, 5\n" if O.slowf == 2 else f"s_mov_b32 s{S_T2}, 0\n"
    return pre + f"s_bitcmp1_b32 {O.slowm}, s{S_F}\ns_cselect_b32 s{S_T2}, s{S_T2}, s{S_M}\ns_add_u32 s{S_T0}, s{S_T2}, s{S_T0}"

def setup_x(e):
    e(f"""
    s_load_dwordx2 s[{SRD_X}:{SRD_X+1}], s[0:1], 0
    s_load_dwordx2 s[{SRD_G}:{SRD_G+1}], s[0:1], 8
    s_load_dwordx2 s[{SRD_U}:{SRD_U+1}], s[0:1], 16
    """)
    if O.cpre:
        e(f"""
        s_getpc_b64 s[{S_PC}:{S_PC+1}]
        L_pc:
        s_bfe_u32 s{S_T0}, s2, 0x20003
        s_mul_i32 s{S_T0}, s{S_T0}, {O.cpn}
        v_add_lshl_u32 v2, v0, s{S_T0}, 7
        v_min_u32 v2, L_end - L_pc - 4, v2
        v_mov_b32 v3, 0
        v_lshl_add_u64 v[2:3], v[2:3], 0, s[{S_PC}:{S_PC+1}]
        v_cmp_gt_u32 vcc, {O.cpn}, v0
        s_and_saveexec_b64 s[{S_PC+4}:{S_PC+5}], vcc
        s_cbranch_execz L_nocp
        global_load_dword v5, v[2:3], off
        L_nocp:
        s_mov_b64 exec, -1
        """)
    if O.lock: O.G = 10 - O.lock
    mg = (65536 + O.G - 1) // O.G
    e(f"""
    v_lshrrev_b32 v1, 6, v0
    v_and_b32 v0, 63, v0
    v_readfirstlane_b32 s{S_WAVE}, v1
    {tile1()}
    {f"s_mul_i32 s{S_T1}, s{S_T1}, {1 if O.pair else O.G // 2}{chr(10)}{slow_m()}{chr(10)}s_add_u32 s{S_T0}, s{S_T0}, s{S_T1}" if O.m162 and (O.G == 10 or O.lock) else f"s_add_u32 s{S_T0}, s{S_M}, s{S_F}"}
    s_mul_i32 s{S_T1}, s{S_T0}, {mg}
    s_lshr_b32 s{S_T1}, s{S_T1}, 16
    s_mul_i32 s{S_T1}, s{S_T1}, {O.G}
    s_sub_u32 s{S_T0}, s{S_T0}, s{S_T1}
    """)
    if O.lock: e(f"s_lshl_b32 s{S_ROT}, s{S_T0}, 7\ns_movk_i32 s{S_SX}, {128 * (10 - O.lock)}")
    elif 10 % O.G == 0: e(f"s_mul_i32 s{S_SX}, s{S_T0}, {1280 // O.G}")
    else: e(f"s_mul_i32 s{S_T0}, s{S_T0}, {10 * mg}\ns_lshr_b32 s{S_SX}, s{S_T0}, 16\ns_lshl_b32 s{S_SX}, s{S_SX}, 7")
    e(f"""
    v_lshrrev_b32 v2, 3, v0
    v_mul_u32_u24 v3, 1280, v2
    v_lshrrev_b32 v4, 4, v0
    v_and_b32 v1, 7, v0
    v_xor_b32 v4, v4, v1
    v_lshl_add_u32 v{V_DX}, v4, 4, v3
    v_xor_b32 v{V_DX+1}, 64, v{V_DX}
    v_add_u32 v{V_DX+1}, {10240-1024}, v{V_DX+1}
    v_add_u32 v{V_DX+2}, {2*(10240-1024)}, v{V_DX}
    v_add_u32 v{V_DX+3}, {2*(10240-1024)}, v{V_DX+1}
    s_lshl2_add_u32 s{S_T0}, s{S_M}, s{S_WAVE}
    s_mov_b32 s{SRD_X+2}, 40960
    s_mul_i32 s{S_T0}, s{S_T0}, s{SRD_X+2}
    s_mov_b32 s{SRD_X+3}, 0x20000
    s_lshl_b32 s{S_MX}, s{S_WAVE}, 12
    s_mov_b32 m0, s{S_MX}
    s_waitcnt lgkmcnt(0)
    """)
    if O.pret:
        e(f"""
        s_mov_b32 s{SRD_G+2}, 4
        s_mov_b32 s{SRD_G+3}, 0x20000
        s_mov_b32 s{SRD_U+2}, 4
        s_mov_b32 s{SRD_U+3}, 0x20000
        s_mov_b64 exec, 1
        buffer_load_dword v28, off, {srd(SRD_G)}, 0
        buffer_load_dword v29, off, {srd(SRD_U)}, 0
        s_mov_b64 exec, -1
        """)
    e(f"""
    s_add_u32 s{SRD_X}, s{SRD_X}, s{S_T0}
    s_addc_u32 s{SRD_X+1}, s{SRD_X+1}, 0
    """)

def setup_w(e):
    e(f"""
    s_load_dwordx2 s[{SRD_D}:{SRD_D+1}], s[0:1], 24
    s_load_dwordx2 s[{SRD_O}:{SRD_O+1}], s[0:1], 32
    s_load_dwordx2 s[{SRD_B}:{SRD_B+1}], s[0:1], 40
    s_load_dwordx2 s[{SRD_H}:{SRD_H+1}], s[0:1], 48
    s_cmp_lt_u32 s{S_WAVE}, 2
    s_cselect_b32 s{SRD_G}, s{SRD_G}, s{SRD_U}
    s_cselect_b32 s{SRD_G+1}, s{SRD_G+1}, s{SRD_U+1}
    s_and_b32 s{S_T2}, s{S_WAVE}, 1
    s_mul_i32 s{S_T0}, s{S_T2}, {16*3072}
    s_mul_i32 s{S_T1}, s{S_F}, 192
    s_add_u32 s{S_T1}, s{S_T1}, s{S_T0}
    s_add_u32 s{SRD_G}, s{SRD_G}, s{S_T1}
    s_addc_u32 s{SRD_G+1}, s{SRD_G+1}, 0
    s_sub_u32 s{SRD_G+2}, {W_BYTES}, s{S_T1}
    s_mov_b32 s{SRD_G+3}, 0x20000
    s_mul_i32 s{S_SW}, s{S_SX}, 1536
    s_add_u32 s{S_SW2}, s{S_SW}, {32*3072}
    s_lshr_b32 s{S_T1}, s{S_WAVE}, 1
    s_lshl2_add_u32 s{S_MG}, s{S_T1}, s{S_T2}
    s_mul_i32 s{S_MG}, s{S_MG}, 3072
    s_movk_i32 s{S_T0}, 2880
    v_lshlrev_b32 v{V_L16}, 4, v0
    v_mul_u32_u24 v2, 5462, v0
    """)
    for j in range(3):
        if j: e(f"v_add_u32 v2, {64*5462}, v2")
        e(f"""
        v_lshrrev_b32 v3, 16, v2
        v_lshrrev_b32 v4, 14, v2
        v_and_b32 v4, 32, v4
        v_xor_b32 v4, v4, v{V_L16}
        v_mad_u32_u24 v{V_DG+j}, v3, s{S_T0}, v4
        """)
        if O.emu:
            e(f"""
            v_add_u32 v4, {1024*j}, v{V_DG+j}
            v_and_b32 v4, 127, v4
            v_mul_u32_u24 v3, 3072, v3
            v_add_u32 v4, v4, v3
            v_subrev_u32 v{37+j}, {1024*j}, v4
            s_and_b32 s{SRD_G}, s{SRD_G}, 0xffffff80
            """)

def stage_ops(st):
    b = (st % 3) * SLOT
    ops = []
    for j in range(4):
        ops.append(Op(f"buffer_load_dwordx4 v{V_DX+j}, {srd(SRD_X)}, s{S_SX} offen offset:{1024*j} lds", ("s", st),
                      [f"s_add_u32 m0, s{S_MX}, {b}"] if j == 0 else []))
    for g in range(2):
        for j in range(3):
            ops.append(Op(f"buffer_load_dwordx4 v{V_DG+j}, {srd(SRD_G)}, s{(S_SW, S_SW2)[g]} offen offset:{1024*j} lds", ("s", st) if g or st else ("s0a",),
                          [f"s_add_u32 m0, s{S_MG}, {b + 16384 + 6144*g}"] if j == 0 else []))
    return ops

def adv_src(nxt):
    if nxt <= O.lock:
        return [f"s_mov_b32 s{S_SX}, s{S_ROT}" if nxt == O.lock else f"s_add_u32 s{S_SX}, s{S_SX}, 128", "s_nop 0", "s_nop 0", f"s_mul_i32 s{S_SW}, s{S_SX}, 1536"]
    return lines(f"""
    s_add_u32 s{S_SX}, s{S_SX}, 128
    s_cmpk_eq_u32 s{S_SX}, {128 * (10 - O.lock)}
    s_cselect_b32 s{S_SX}, 0, s{S_SX}
    s_mul_i32 s{S_SW}, s{S_SX}, 1536
    s_add_u32 s{S_SW2}, s{S_SW}, {32*3072}
    """)

def setup_reads(e):
    e(f"""
    v_and_b32 v2, 15, v0
    v_lshlrev_b32 v{V_DBG}, 2, v2
    s_lshr_b32 s{S_T0}, s{S_WAVE}, 1
    s_lshl_b32 s{S_T0}, s{S_T0}, 13
    v_lshlrev_b32 v3, 7, v2
    v_add_u32 v3, s{S_T0}, v3
    v_bfe_u32 v4, v0, 1, 3
    v_lshrrev_b32 v1, 4, v0
    v_xor_b32 v4, v4, v1
    v_lshl_add_u32 v{V_RX[0]}, v4, 4, v3
    v_xor_b32 v{V_RX[0]+1}, 64, v{V_RX[0]}
    v_bfe_u32 v4, v0, 2, 2
    v_lshl_add_u32 v3, v1, 3, v4
    v_mul_u32_u24 v3, 192, v3
    v_and_b32 v4, 3, v0
    v_lshl_add_u32 v3, v4, 3, v3
    v_add_u32 v3, 16384, v3
    v_and_b32 v2, 1, v1
    s_and_b32 s{S_T0}, s{S_WAVE}, 1
    s_mul_i32 s{S_T0}, s{S_T0}, 3
    """)
    for a in range(3):
        e(f"""
        s_add_u32 s{S_T1}, s{S_T0}, {a}
        v_xor_b32 v4, s{S_T1}, v2
        v_lshl_add_u32 v{V_RW[0]+a}, v4, 5, v3
        """)
    for i in range(5): e(f"v_add_u32 v{V_RX[1]+i}, {2*SLOT}, v{V_RX[0]+i}")

def setup_repack(e):
    P, T = S_T3, S_T1
    e(f"""
    s_mul_i32 s{S_T0}, s2, 13108
    s_lshr_b32 s{P}, s{S_T0}, 16
    s_mul_i32 s{T}, s{P}, 5
    s_sub_u32 s{T}, s2, s{T}
    s_mov_b32 s{SRD_D+2}, {W_BYTES}
    s_mov_b32 s{SRD_D+3}, 0x20000
    v_lshrrev_b32 v2, 4, v0
    v_bfe_u32 v3, v0, 1, 3
    v_xor_b32 v3, v3, v2
    s_and_b32 s{S_T0}, s{S_WAVE}, 1
    s_lshl_b32 s{S_T0}, s{S_T0}, 2
    v_xor_b32 v3, s{S_T0}, v3
    v_and_b32 v4, 1, v0
    v_lshlrev_b32 v4, 4, v4
    v_mul_u32_u24 v2, 1280, v2
    v_add_u32 v2, v2, v4
    v_lshl_add_u32 v{V_RD}, v3, 5, v2
    s_lshl2_add_u32 s{S_T0}, s{P}, s{S_WAVE}
    s_mul_i32 s{S_T0}, s{S_T0}, {8*1280}
    s_lshl_b32 s{S_T2}, s{T}, 8
    s_add_u32 s{S_T0}, s{S_T0}, s{S_T2}
    v_add_u32 v{V_RD}, s{S_T0}, v{V_RD}
    v_add_u32 v{V_RD+1}, {4*1280-1024}, v{V_RD}
    s_bfe_u32 s{S_GRP}, s2, 0x10005
    s_lshl_b32 s{S_MR}, s{S_WAVE}, 11
    s_add_u32 s{S_MR}, s{S_MR}, {RPB}
    s_lshl_b32 s{T}, s{T}, 3
    s_mul_i32 s{S_T0}, s{P}, 5462
    s_lshr_b32 s{S_T0}, s{S_T0}, 16
    s_add_u32 s{S_T0}, s{S_T0}, s{T}
    s_lshl_b32 s{S_T0}, s{S_T0}, 8
    s_add_u32 s{S_T0}, s{S_T0}, {CNT_OFF + 1024}
    s_cmp_eq_u32 s{S_WAVE}, 0
    s_cselect_b32 s{S_T0}, s{S_T0}, s{SRD_H+2}
    s_cmp_lt_u32 s2, 240
    s_cselect_b32 s{S_T0}, s{S_T0}, s{SRD_H+2}
    v_lshl_add_u32 v{V_SG}, v0, 25, s{S_T0}
    s_lshl_b32 s{S_T2}, s{S_WAVE}, 1
    s_add_u32 s{T}, s{T}, s{S_T2}
    s_mul_i32 s{P}, s{P}, 5
    """)
    for u, dst in ((0, S_RP0), (1, S_RP1)):
        e(f"""
        s_add_u32 s{S_T0}, s{T}, {u}
        s_mul_i32 s{dst}, s{S_T0}, 13108
        s_lshr_b32 s{dst}, s{dst}, 16
        s_mul_i32 s{dst}, s{dst}, 235
        s_add_u32 s{dst}, s{dst}, s{S_T0}
        s_add_u32 s{dst}, s{dst}, s{P}
        s_lshl_b32 s{dst}, s{dst}, 10
        s_add_u32 s{dst}, s{dst}, {WP_OFF}
        s_cmp_lt_u32 s2, 240
        s_cselect_b32 s{dst}, s{dst}, s{SRD_H+2}
        """)
    e(f"""
    v_bfe_u32 v2, v0, 4, 1
    v_bfe_u32 v3, v0, 2, 2
    v_lshl_add_u32 v2, v2, 2, v3
    v_lshrrev_b32 v4, 4, v0
    v_lshl_add_u32 v3, v4, 3, v3
    v_lshlrev_b32 v3, 8, v3
    v_and_b32 v4, 3, v0
    v_lshl_add_u32 v3, v4, 3, v3
    v_add_u32 v3, {RPB}, v3
    v_xor_b32 v2, s{S_T2}, v2
    v_lshl_add_u32 v{V_RR0}, v2, 5, v3
    v_xor_b32 v{V_RR0+1}, 32, v{V_RR0}
    """)

def setup_p2(e):
    e(f"""
    s_and_b32 s{S_T0}, s2, 6
    s_lshr_b32 s{S_T1}, s2, 5
    s_lshl2_add_u32 s{S_R}, s{S_T0}, s{S_T1}
    s_and_b32 s{S_T0}, s2, 1
    s_bfe_u32 s{S_C}, s2, 0x20003
    s_lshl2_add_u32 s{S_C}, s{S_T0}, s{S_C}
    s_mul_i32 s{S_LW}, s{S_WAVE}, 10240
    s_lshl2_add_u32 s{S_T0}, s{S_C}, s{S_WAVE}
    s_mul_i32 s{S_T0}, s{S_T0}, {12*5120}
    s_add_u32 s{S_WB}, s{S_T0}, {WP_OFF}
    v_add_u32 v{V_L16B}, 4096, v{V_L16}
    v_and_b32 v2, 1, v0
    s_mul_i32 s{S_T0}, s{S_C}, 5
    v_lshl_add_u32 v2, v2, 2, s{S_T0}
    v_and_b32 v2, 0x38, v2
    s_add_u32 s{S_T0}, s{S_WAVE}, {4 + (CNT_OFF >> 8)}
    v_add_lshl_u32 v{V_CHA}, v2, s{S_T0}, 8
    s_mov_b32 s{SRD_O+2}, {X_BYTES}
    s_mov_b32 s{SRD_O+3}, 0x20000
    s_lshl2_add_u32 s{S_T0}, s{S_R}, s{S_WAVE}
    s_mul_i32 s{S_T1}, s{S_T0}, 49152
    s_mul_i32 s{S_T2}, s{S_R}, 26
    s_lshr_b32 s{S_T2}, s{S_T2}, 8
    s_lshl_b32 s{S_T2}, s{S_T2}, 17
    s_add_u32 s{S_T1}, s{S_T1}, s{S_T2}
    v_add_u32 v2, s{S_T1}, v{V_L16}
    s_mul_i32 s{S_T0}, s{S_T0}, {16*1280}
    s_mul_i32 s{S_T1}, s{S_C}, 160
    s_add_u32 s{S_OO}, s{S_T0}, s{S_T1}
    """)
    for j in range(4):
        e(f"""
        s_add_u32 s{S_T0}, s{S_WAVE}, {j+1}
        s_and_b32 s{S_T0}, s{S_T0}, 3
        s_lshl_b32 s{S_T0}, s{S_T0}, 10
        v_add_u32 v{V2_HL+j}, s{S_T0}, v2
        """)
    e(f"""
    s_lshr_b32 s{S_T1}, s{S_F}, 2
    s_lshl3_add_u32 s{S_T0}, s{S_M}, s{S_T1}
    s_lshl_b32 s{S_T0}, s{S_T0}, 8
    s_add_u32 s{S_T0}, s{S_T0}, {CNT_OFF}
    s_cmp_eq_u32 s{S_WAVE}, 0
    s_cselect_b32 s{S_T0}, s{S_T0}, s{SRD_H+2}
    v_lshl_add_u32 v{V_SH}, v0, 25, s{S_T0}
    s_lshr_b32 s{S_T0}, s{S_R}, 1
    s_lshl3_add_u32 s{S_T0}, s{S_T0}, s{S_WAVE}
    s_lshl_b32 s{S_T0}, s{S_T0}, 8
    s_add_u32 s{S_CP}, s{S_T0}, {CNT_OFF}
    v_bfe_u32 v2, v0, 4, 1
    v_lshlrev_b32 v2, 10, v2
    v_lshrrev_b32 v3, 5, v0
    v_lshl_add_u32 v2, v3, 8, v2
    v_and_b32 v3, 15, v0
    v_lshl_add_u32 v{V_HOFF}, v3, 4, v2
    s_lshr_b32 s{S_T0}, s{S_WAVE}, 1
    s_lshl1_add_u32 s{S_T0}, s{S_M}, s{S_T0}
    s_mul_i32 s{S_T2}, s{S_T0}, 26
    s_lshr_b32 s{S_T2}, s{S_T2}, 8
    s_lshl_b32 s{S_T2}, s{S_T2}, 17
    s_mul_i32 s{S_T0}, s{S_T0}, 196608
    s_add_u32 s{S_T0}, s{S_T0}, s{S_T2}
    s_and_b32 s{S_T1}, s{S_WAVE}, 1
    s_lshl1_add_u32 s{S_T1}, s{S_F}, s{S_T1}
    s_mul_i32 s{S_T1}, s{S_T1}, 3
    """)
    for a in range(3):
        e(f"""
        s_add_u32 s{S_T2}, s{S_T1}, {a}
        s_and_b32 s{S_HST+a}, s{S_T2}, 1
        s_mul_i32 s{S_HST+a}, s{S_HST+a}, {512 - 2048}
        s_lshl_b32 s{S_T2}, s{S_T2}, 11
        s_add_u32 s{S_HST+a}, s{S_HST+a}, s{S_T2}
        s_add_u32 s{S_HST+a}, s{S_HST+a}, s{S_T0}
        """)
    for i in range(12): e(f"s_mov_b32 s{S_P+i}, {4096*i}")

def slot_addr(st): return (1, 0) if st % 3 == 2 else (0, (st % 3) * SLOT)
def rdB(st, ks, j, buf=None):
    buf = ks if buf is None else buf
    k, off = slot_addr(st)
    return f"ds_read_b128 {vr(V_B + buf*16 + j*4, 4)}, v{V_RX[k]+ks} offset:{off + j*2048}"
def rdA(st, ks, t):
    a, gu = t >> 1, t & 1
    k, off = slot_addr(st)
    return [f"ds_read_b64_tr_b16 {vr(V_A + ks*24 + t*4 + half*2, 2)}, v{V_RW[k]+a} offset:{off + gu*12288 + (32*ks + 4*half)*192}" for half in range(2)]
def p1_reads(st, ks):
    return [rdB(st, ks, 0)] + rdA(st, ks, 0) + [rdB(st, ks, j) for j in (1, 2, 3)] + [x for t in range(1, 6) for x in rdA(st, ks, t)]
def acc1(t, j): return V_ACC1 + (t*4 + j)*4
def mf1(ks, t, j, buf=None, first=False):
    buf = ks if buf is None else buf
    acc = vr(acc1(t, j), 4)
    return f"v_mfma_f32_16x16x32_bf16 {acc}, {vr(V_A + ks*24 + t*4, 4)}, {vr(V_B + buf*16 + j*4, 4)}, {'0' if first else acc}"

def jord(t): return range(3, -1, -1) if O.snake and t & 1 else range(4)
DMA_GAPS = [2, 7, 12, 17, 22, 26, 31, 35, 39, 43]

def body(e, vq, st, ops, fill, need, gaps):
    NR = O.nrest
    s0 = [mf1(0, t, j, first=(st == 0)) for t in range(6) for j in jord(t)]
    s1 = [mf1(1, t, j) for t in range(6) for j in jord(t)]
    mf = s1[24-NR:] + s0 + s1[:24-NR]
    rd = p1_reads(st, 0) + p1_reads(st, 1)
    last = {NR: 3, NR + 2: 5, NR + 4: 9, NR + 12: 15, NR + 24: 16 + 5 + 2 * ((24 - NR - 1) // 4)}
    at = dict(zip(gaps, ops))
    p0 = NR if st == 0 else 0
    nrd = p0 + 1
    e(rd[:nrd])
    for g in gaps:
        if g < p0 and g in at: emit(e, vq, at[g])
    for p in range(p0, 48):
        if p in last: e(f"s_waitcnt lgkmcnt({min(15, nrd - 1 - last[p])})")
        e(mf[p])
        if nrd < 32: e(rd[nrd]); nrd += 1
        if p in at: vq.issue(at[p].ins, at[p].tag)
        if p + 1 in at: e(at[p + 1].pre)
        for x in fill.get(p, []): emit(e, vq, x)
    vq.wait(need, "lgkmcnt(0)")
    if not O.nobar: e("s_barrier")

def place(fill, L, p0):
    L = list(L)
    for p in range(p0, 48):
        if p in (44, 45) or p + 1 in DMA_GAPS and DMA_GAPS.index(p + 1) in (0, 4, 7): continue
        room = 3 - (1 if p < 31 else 0) - (1 if p in DMA_GAPS else 0) - len(fill.get(p, []))
        nv, out = 0, []
        while L and room > 0:
            if L[0].startswith("v_"):
                if nv: break
                nv = 1
            n = 1
            if L[0].startswith("s_cmp"):
                while n < len(L) and L[n].startswith("s_cselect"): n += 1
            out += L[:n]; del L[:n]; room -= n
        if out: fill.setdefault(p, []); fill[p] = fill[p] + out
    assert not L, len(L)

def spin(e, tail, name, cmp, reload):
    e(f"{cmp}\ns_cbranch_vccnz L_{name}\nL_{name}_ok:")
    tail += lines(f"""
    L_{name}:
    s_mov_b32 s{S_SPIN}, 0
    L_{name}_1:
    {reload}
    s_add_u32 s{S_SPIN}, s{S_SPIN}, 1
    s_cmp_gt_u32 s{S_SPIN}, 20000
    s_cbranch_scc1 L_{name}_ok
    s_waitcnt vmcnt(0)
    {cmp}
    s_cbranch_vccnz L_{name}_1
    s_branch L_{name}_ok
    """)

def wd_ops(i):
    return [Op(f"buffer_load_dwordx4 {ar(20*i + 4*t, 4)}, v{V_L16 if t < 4 else V_L16B}, {srd(SRD_H)}, s{S_DS} offen offset:{1024*(t&3)} sc1",
               ("w", i), [f"s_add_u32 s{S_DS}, s{S_WB}, {5120*i}"] if t == 0 else []) for t in range(5)]
def h_loads(i):
    return [f"buffer_load_dwordx4 {vr(V2_H + (i%6)*16 + j*4, 4)}, v{V2_HL+j}, {srd(SRD_H)}, s{S_P+i} offen sc1" for j in range(4)]

def out_addr(e, V_OA, V_OB):
    e(f"""
    v_and_b32 v{V_OB}, 15, v0
    v_mul_u32_u24 v{V_OB}, 1280, v{V_OB}
    v_bfe_u32 v{V_OA}, v0, 4, 1
    v_lshl_add_u32 v{V_OA}, v{V_OA}, 5, v{V_OB}
    v_lshrrev_b32 v16, 5, v0
    v_lshl_add_u32 v{V_OA}, v16, 4, v{V_OA}
    v_lshrrev_b32 v16, 4, v0
    v_lshl_add_u32 v{V_OB}, v16, 3, v{V_OB}
    """)

def phase2_ring(e, vq):
    NB = 16
    ACC, IN = (160, 180), 200
    V_W, V_R, V_OA, V_OB = 2, 3, 14, 15
    def hload(n): return f"buffer_load_dwordx4 {vr(V2_H + (n % NB)*4, 4)}, v{V2_HL + n // 12}, {srd(SRD_H)}, s{S_P + n % 12} offen sc1"
    for n in range(O.hn): vq.issue(hload(n), ("h", n))
    e(f"""
    s_lshl_b32 s{S_T0}, s{S_WAVE}, 14
    v_lshl_add_u32 v{V_W}, v0, {dict([(128, 4), (64, 3), (32, 2)])[O.wr]}, s{S_T0}
    s_add_u32 s{S_T0}, s{S_T0}, 16384
    s_and_b32 s{S_T0}, s{S_T0}, 0xffff
    v_lshl_add_u32 v{V_R}, v0, {dict([(128, 4), (64, 3), (32, 2)])[O.wr]}, s{S_T0}
    """)
    out_addr(e, V_OA, V_OB)
    for r in range(4):
        fill = {}
        if r >= 1:
            P = ACC[(r - 1) & 1]
            if r >= 2:
                fill[3] = ["s_waitcnt lgkmcnt(0)"]
                for i in range(20): fill[4 + i] = [f"v_add_f32 v{P+i}, v{P+i}, v{IN+i}"]
            w0 = O.rw0 if r >= 2 else 8
            nw = O.wr // 32
            reg = lambda a: vr(a, nw) if nw > 1 else f"v{a}"
            for i in range(20 // nw):
                fill.setdefault(w0 + O.wstep*i, []).append(f"ds_write_b{O.wr} v{V_W}, {reg(P + nw*i)} offset:{(r-1)*5120 + i*256*nw}")
            assert w0 + O.wstep * (20 // nw - 1) < O.rbar
            fill[O.rbar] = ["s_waitcnt lgkmcnt(0)", "s_barrier"]
            for i in range(20 // nw):
                fill.setdefault(min(59, O.rbar + 1 + i // (2 if nw == 1 else 1)), []).append(f"ds_read_b{O.wr} {reg(IN + nw*i)}, v{V_R} offset:{(r-1)*5120 + i*256*nw}")
        for s in range(12):
            n = 12 * r + s
            vq.wait({("h", n), ("w", s)})
            if (O.fine and s == 0) or n == 0: stamp(e)
            for t in range(5):
                acc = vr(ACC[r & 1] + 4*t, 4)
                e(f"v_mfma_f32_16x16x32_bf16 {acc}, {ar(20*s + 4*t, 4)}, {vr(V2_H + (n % NB)*4, 4)}, {acc if s else '0'}")
                if t == 0 and n + O.hn < 48: vq.issue(hload(n + O.hn), ("h", n + O.hn))
                e(fill.get(5*s + t, []))
    P = ACC[1]
    if O.t3:
        stamp(e)
        def fin(t):
            b = P + 4*t
            return [f"v_add_f32 v{b+i}, v{b+i}, v{IN+4*t+i}" for i in range(4)] + \
                   [f"v_cvt_pk_bf16_f32 v{144+2*t}, v{b}, v{b+1}", f"v_cvt_pk_bf16_f32 v{145+2*t}, v{b+2}, v{b+3}"]
        def st4(r, off):
            return [f"v_permlane16_swap_b32 v{r}, v{r+2}", f"v_permlane16_swap_b32 v{r+1}, v{r+3}",
                    f"buffer_store_dwordx4 {vr(r,4)}, v{V_OA}, {srd(SRD_O)}, s{S_OO} offen offset:{off} {O.ostore}"]
        e("s_waitcnt lgkmcnt(0)\ns_nop 2")
        e(fin(0) + fin(1) + fin(2)[:2] + st4(144, 0) + fin(2)[2:] + fin(3) + fin(4)[:2] + st4(148, 64) + fin(4)[2:])
        e(f"buffer_store_dwordx2 {vr(152,2)}, v{V_OB}, {srd(SRD_O)}, s{S_OO} offen offset:128 {O.ostore}")
        return
    stamp(e)
    e("s_waitcnt lgkmcnt(0)\ns_nop 2")
    for t in range(5):
        b = P + 4*t
        for h in range(2): e(f"v_pk_add_f32 {vr(b+2*h,2)}, {vr(b+2*h,2)}, {vr(IN+4*t+2*h,2)}")
        e(f"v_cvt_pk_bf16_f32 v{144+2*t}, v{b}, v{b+1}")
        e(f"v_cvt_pk_bf16_f32 v{145+2*t}, v{b+2}, v{b+3}")
        if t in (1, 3):
            r = 144 + 2 * (t - 1)
            e(f"s_nop 1\nv_permlane16_swap_b32 v{r}, v{r+2}\nv_permlane16_swap_b32 v{r+1}, v{r+3}")
            e(f"buffer_store_dwordx4 {vr(r,4)}, v{V_OA}, {srd(SRD_O)}, s{S_OO} offen offset:{32*(t-1)} {O.ostore}")
        if t == 4:
            e(f"buffer_store_dwordx2 {vr(152,2)}, v{V_OB}, {srd(SRD_O)}, s{S_OO} offen offset:128 {O.ostore}")

_jn = [0]
def jitter(e, bit, mul, per_wave=False):
    if not (O.jit >> bit) & 1: return
    _jn[0] += 1; n = _jn[0]
    e(f"""
    s_memrealtime s[88:89]
    s_waitcnt lgkmcnt(0)
    s_lshr_b32 s88, s88, 12
    s_add_u32 s88, s88, s2
    {f"s_add_u32 s88, s88, s{S_WAVE}" if per_wave else ""}
    s_mul_i32 s88, s88, {mul}
    s_bfe_u32 s88, s88, 0x50008
    L_jit{n}:
    s_cmp_eq_u32 s88, 0
    s_cbranch_scc1 L_jit{n}e
    s_sleep 8
    s_sub_u32 s88, s88, 1
    s_branch L_jit{n}
    L_jit{n}e:
    """)

def kernel(e):
    tail = []
    vq = VQ(e)
    e("s_cmp_ge_u32 s2, 256\ns_cbranch_scc1 L_done")
    stamp_init(e)
    jitter(e, 0, 40503)
    setup_x(e)
    if O.pro: stamp(e)
    ops = stage_ops(0)
    for op in ops[:4]: vq.issue(op.ins, op.tag)
    setup_w(e)
    for op in ops[4:]: emit(e, vq, op)
    if O.halft == 2:
        stamp(e)
        for n in (9, 6, 3, 0): e(f"s_waitcnt vmcnt({n})"); stamp(e)
    if O.halft == 1:
        vq.wait({("s0a",)}); e("s_barrier"); stamp(e)
        vq.wait({("s", 0)}); e("s_barrier"); stamp(e)
    if O.pro: stamp(e)
    e(f"""
    s_mov_b32 s{SRD_H+2}, {WS_BYTES}
    s_mov_b32 s{SRD_H+3}, 0x20000
    s_mov_b32 s{SRD_B+2}, 256
    s_mov_b32 s{SRD_B+3}, 0x20000
    s_lshl_b32 s{S_T0}, s{S_F if O.z240 else S_M}, 11
    s_add_u32 s{S_T0}, s{S_T0}, {CNT_OFF}
    s_lshl_b32 s{S_T1}, s{S_F if O.z240 else S_M}, 2
    {f"s_sub_u32 s{S_T2}, 15, s{S_M}" if O.z240 else f"s_mov_b32 s{S_T2}, s{S_F}"}
    s_or_b32 s{S_T2}, s{S_T2}, s{S_WAVE}
    s_cmp_eq_u32 s{S_T2}, 0
    s_cselect_b32 s{S_T0}, s{S_T0}, s{SRD_H+2}
    s_cselect_b32 s{S_T1}, s{S_T1}, s{SRD_B+2}
    v_lshrrev_b32 v2, 3, v0
    v_lshlrev_b32 v2, 25, v2
    v_and_b32 v3, 7, v0
    v_lshl_add_u32 v2, v3, 8, v2
    v_lshl_add_u32 v{V_FL}, v0, 8, s{S_T1}
    v_mov_b32 v3, 0
    v_mov_b32 v{V_ONE}, 1
    v_mov_b32 v{V_CHK}, 1
    s_waitcnt lgkmcnt(0)
    """)
    vq.issue(masked(f"buffer_store_dword v3, v2, {srd(SRD_H)}, s{S_T0} offen sc1", 0xff), "zero")
    if O.tlb & 1:
        e(f"""
        s_mov_b32 s{SRD_D+2}, {W_BYTES}
        s_mov_b32 s{SRD_D+3}, 0x20000
        v_min_u32 v2, 4, v0
        v_lshlrev_b32 v2, 21, v2
        v_add_u32 v2, {(2 << 20) - 128}, v2
        v_mov_b32 v4, 128
        """)
        vq.issue(masked(f"buffer_load_dword v27, v2, {srd(SRD_H)}, 0 offen", 0x1f), "tl")
        vq.issue(masked(f"buffer_load_dword v28, v4, {srd(SRD_D)}, 0 offen"), "tl")
        vq.issue(masked(f"buffer_load_dword v29, v4, {srd(SRD_B)}, 0 offen"), "tl")
    if O.warm:
        e(f"""
        s_mov_b64 exec, 0
        s_cmp_eq_u32 s{S_WAVE}, 1
        s_cbranch_scc1 L_warm0
        s_cmp_eq_u32 s{S_WAVE}, 2
        s_cbranch_scc1 L_warm1
        L_warm_ret:
        s_mov_b64 exec, -1
        """)
    rp_dma = [Op(f"buffer_load_dwordx4 v{V_RD}, {srd(SRD_D)}, 0 offen {'nt' if O.ntr else ''} lds", "rpl", [f"s_mov_b32 m0, s{S_MR}"]),
              Op(f"buffer_load_dwordx4 v{V_RD+1}, {srd(SRD_D)}, 0 offen offset:1024 {'nt' if O.ntr else ''} lds", "rpl")]
    rp_rest = None
    if O.rpa == -2:
        t = E(); setup_repack(t); L = [x.strip() for x in t.L]
        k = max(i for i, x in enumerate(L) if f"s{S_MR}," in x) + 1
        e(L[:k])
        for op in rp_dma: emit(e, vq, op)
        e(L[k:])
        rp_rest = True
    e(adv_src(1))
    setup_reads(e)
    lateq = {}
    if O.late and O.rpa >= 1:
        t = E(); setup_repack(t); L = [x.strip() for x in t.L]
        k = max(i for i, x in enumerate(L) if f"s{S_MR}," in x) + 1
        lateq[0], lateq[1] = L[:k], L[k:]
        t = E(); setup_p2(t); L = [x.strip() for x in t.L]
        k = len(L) // 2
        while L[k].startswith('s_cselect') or L[k - 1].startswith('s_cmp'): k += 1
        lateq[5], lateq[6] = L[:k], L[k:]
    else:
        if not rp_rest: setup_repack(e)
        setup_p2(e)
    if O.pro: stamp(e)
    sites = O.sites.split("/") if O.sites else []
    if sites:
        e(f"s_bfe_u32 s{S_T0}, s2, 0x20003\ns_mul_i32 s{S_T0}, s{S_T0}, {len(sites)}\ns_lshr_b32 s{S_T0}, s{S_T0}, 2\ns_add_u32 s{S_T1}, s{S_MR}, 8192")
        for k in range(len(sites)):
            e(f"s_cmp_eq_u32 s{S_T0}, {k}\ns_cselect_b32 s{S_SM+k}, s{S_MR}, s{S_T1}\ns_cselect_b32 s{S_SO+k}, 0, s{SRD_D+2}")
    def site_ops(k):
        return [Op(f"buffer_load_dwordx4 v{V_RD}, {srd(SRD_D)}, s{S_SO+k} offen lds", "rpl", [f"s_mov_b32 m0, s{S_SM+k}"]),
                Op(f"buffer_load_dwordx4 v{V_RD+1}, {srd(SRD_D)}, s{S_SO+k} offen offset:1024 lds", "rpl")]
    if O.pal: e("s_branch L_pg1\n.p2align 12\nL_pg1:")
    for op in stage_ops(1): emit(e, vq, op)
    e(adv_src(2))
    if "P" in sites:
        for op in site_ops(sites.index("P")): emit(e, vq, op)
    if O.rpa == -1:
        for op in rp_dma: emit(e, vq, op)
    stamp(e)
    vq.wait({("s", 0), "zero"} | ({"rpl"} if O.rpa == -2 and O.rlag == 2 else set()))
    e("s_barrier")
    if O.pro: stamp(e)
    if O.oob & 1: e(f"s_mov_b32 s{SRD_X+2}, 0\ns_mov_b32 s{SRD_G+2}, 0\ns_mov_b32 s{SRD_U+2}, 0")
    if O.oob & 2: e(f"s_mov_b32 s{S_WB}, s{SRD_H+2}")
    vq.issue(masked(f"buffer_store_dword v{V_ONE}, v{V_FL}, {srd(SRD_B)}, 0 offen sc1"), "flag")
    rp_rd = [f"ds_read_b64_tr_b16 {vr(V_RT + 4*u + 2*h, 2)}, v{V_RR0+u} offset:{1024*h}" for u in range(2) for h in range(2)]
    rp_st = [Op(f"buffer_store_dwordx4 {vr(V_RT + 4*u, 4)}, v{V_L16}, {srd(SRD_H)}, s{S_RP0+u} offen sc1", "rps") for u in range(2)]
    wd = [op for i in range(12) for op in wd_ops(i)]
    def take(n):
        out = wd[:n]; del wd[:n]; return out
    a = O.rpa
    casc = [int(x) for x in O.casc.split("/")] if O.casc else None
    allops = [op for k in range(2, 10) for op in stage_ops(k)]
    for st in range(9):
        src = adv_src(st + 3)
        fill = {44: src[:2], 45: src[2:4], 46: src[4:]} if st < 7 else {}
        need = {("s", st + 1)}
        ops = stage_ops(st + 2) if st < 8 else take(O.b7)
        cgaps = None
        if casc and st < 8:
            ops, allops = allops[:casc[st]], allops[casc[st]:]
            g0 = O.cg0 if st == a else 2
            cgaps = DMA_GAPS if len(ops) == 10 and g0 == 2 else [g0 + ((43 - g0) * k) // (len(ops) - 1) for k in range(len(ops))]
            fill = {}
            for k, op in enumerate(ops):
                nxt = ops[k + 1] if k + 1 < len(ops) else (allops[0] if allops else None)
                if nxt is not None and nxt.tag != op.tag:
                    src = adv_src(nxt.tag[1])
                    fill[cgaps[k] + 1], fill[cgaps[k] + 2] = src[:3], src[3:]
        if O.nodma and st < 8: ops = []
        def cond(g, L, name):
            t = E(); q = VQ(t)
            t(L) if not any(isinstance(x, Op) for x in L) else [emit(t, q, x) for x in L]
            return [f"s_cmp_eq_u32 s{S_GRP}, {g}", f"s_cbranch_scc0 L_{name}{st}"] + [x.strip() for x in t.L] + [f"L_{name}{st}:"]
        chk = f"buffer_load_dword v{V_CHK}, v{V_DBG}, {srd(SRD_B)}, 0 offen sc1"
        sig = Op(masked(f"buffer_atomic_add v{V_ONE}, v{V_SG}, {srd(SRD_H)}, 0 offen sc1"), "sig")
        if O.norp: pass
        elif O.rpg == 1:
            if O.rpe and st == a - 1:
                fill.setdefault(O.rpe - 1, []).append(rp_dma[0].pre[0])
                fill.setdefault(O.rpe, []).append(Op(rp_dma[0].ins, "rpl"))
                fill.setdefault(O.rpe + 1, []).append(rp_dma[1])
            for k, sname in enumerate(sites):
                if sname == "T" and st == a:
                    for op in site_ops(k): emit(e, vq, op)
                if sname.isdigit() and st == a - 1:
                    g = int(sname)
                    nxt = min(x for x in DMA_GAPS + [99] if x > g)
                    L = site_ops(k)
                    if nxt != 99 and not ops[DMA_GAPS.index(nxt)].pre:
                        j = max(i for i in range(DMA_GAPS.index(nxt)) if ops[i].pre)
                        L.append(ops[j].pre[0])
                    fill.setdefault(g, []).extend(L)
            if st == a and not O.rpe and not sites:
                for op in rp_dma: emit(e, vq, op)
            if st == max(a + O.rlag - 1, 0): need.add("rpl")
            if a + O.rlag < (0 if a == -2 else 1): raise SystemExit("rlag too small")
            if st == a + O.rlag:
                e(rp_rd)
                fill[O.stg] = fill.get(O.stg, []) + [rp_st[0]]; fill[O.stg + 1] = [rp_st[1]]
                if O.t6 and st > 0: fill[0] = [Op(chk, "chk")]
            if st == a + O.rlag + 1:
                if not O.t6 or st == 1: fill[0] = [Op(chk, "chk")]
                need |= {"rps", "chk"}
            if st == a + O.rlag + 2:
                spin(e, tail, "zchk", f"v_cmp_ne_u32 vcc, 1, v{V_CHK}", chk)
                fill[0] = [sig]
        else:
            for g in range(2):
                if st == a + g: e(cond(g, rp_dma, "ca"))
                if st == a + g + 1:
                    e(cond(g, rp_rd, "cb"))
                    fill[O.stg] = cond(g, rp_st, "cc")
                if st == a + g + 3: fill[0] = cond(g, [sig], "cd")
            if st == a + 2:
                if O.chk0: fill[0] = [f"s_cmp_eq_u32 s{S_WAVE}, 0", "s_cbranch_scc0 L_nochk", chk, "L_nochk:"]
                else: fill[0] = [Op(chk, "chk")]; need.add("chk")
            if st == a + 3: spin(e, tail, "zchk", f"v_cmp_ne_u32 vcc, 1, v{V_CHK}", chk)
        if st == 7:
            fill[O.pg] = [Op(f"buffer_load_dword v{V_CHK}, v{V_CHA}, {srd(SRD_H)}, 0 offen sc1", "rpp")]
            if not O.t5: need.add("rpp")
        gaps = cgaps or DMA_GAPS
        if st == 8 and not O.norp:
            t = E() if O.t5 else e
            if O.t5: t(f"s_waitcnt vmcnt({vq.count({'rpp'})})")
            spin(t, tail, "rchk", f"v_cmp_ne_u32 vcc, 12, v{V_CHK}", f"buffer_load_dword v{V_CHK}, v{V_CHA}, {srd(SRD_H)}, 0 offen sc1")
            if not O.t5: gaps = [1 + (46 * k) // len(ops) for k in range(len(ops))]
            if O.t5:
                fill[8] = [x.strip() for x in t.L]
                gaps = [10 + (36 * k) // len(ops) for k in range(len(ops))]
        if st in lateq: place(fill, lateq[st], O.nrest if st == 0 else 1)
        body(e, vq, st, ops, fill, need, gaps)
        if O.fine or st == 8: stamp(e)
        if st in (1, 3, 6): jitter(e, 1, 30011 + 2 * st, True)
    NR = O.nrest
    s1 = [mf1(1, t, j) for t in range(6) for j in jord(t)]
    units = [(a, jp) for a in range(3) for jp in (0, 2)]
    mf = s1[24-NR:]
    for a, jp in units:
        mf += [mf1(ks, 2*a + gu, jp + d, 2 * ks) for ks in range(2) for gu in range(2) for d in range(2)]
    rd = [rdB(9, 0, 0)] + rdA(9, 0, 0) + [rdB(9, 0, 1)] + rdA(9, 0, 1) + [rdB(9, 1, 0, 2)] + rdA(9, 1, 0) + [rdB(9, 1, 1, 2)] + rdA(9, 1, 1)
    rd += [rdB(9, 0, 2), rdB(9, 0, 3), rdB(9, 1, 2, 2), rdB(9, 1, 3, 2)]
    for t in (2, 4): rd += rdA(9, 0, t) + rdA(9, 0, t + 1) + rdA(9, 1, t) + rdA(9, 1, t + 1)
    rd_at, k = {}, 0
    for p in range(-1, 40):
        n = 2 if p < 6 else 1
        rd_at[p], k = rd[k:k+n], min(k + n, 32)
    needs = {NR: 5, NR + 4: 11, NR + 8: 15, NR + 16: 23, NR + 32: 31}
    def epi(a, jp, pk=False):
        L = []
        for d in range(2):
            g = acc1(2*a, jp + d)
            L += [f"v_max_f32 v{g+r}, 0, v{g+r}" for r in range(4)]
        for d in range(2):
            g, u = acc1(2*a, jp + d), acc1(2*a + 1, jp + d)
            if pk: L += [f"v_pk_mul_f32 {vr(g+2*h,2)}, {vr(g+2*h,2)}, {vr(u+2*h,2)}" for h in range(2)]
            else: L += [f"v_mul_f32 v{g+r}, v{g+r}, v{u+r}" for r in range(4)]
        u = acc1(2*a + 1, jp)
        for d in range(2):
            g = acc1(2*a, jp + d)
            L += [f"v_cvt_pk_bf16_f32 v{u+2*d+h}, v{g+2*h}, v{g+2*h+1}" for h in range(2)]
        L += ["s_nop 1", f"v_permlane16_swap_b32 v{u}, v{u+2}", f"v_permlane16_swap_b32 v{u+1}, v{u+3}"]
        return L + [Op(f"buffer_store_dwordx4 {vr(u,4)}, v{V_HOFF}, {srd(SRD_H)}, s{S_HST+a} offen offset:{jp*1024} {O.hstore}", "st")]
    if O.wg9: O.b8 = len(O.wg9.split('/'))
    wops = take(O.b8)
    wgaps = [int(x) for x in O.wg9.split('/')] if O.wg9 else [int(O.w0 + k * O.wd) for k in range(len(wops))]
    issued, pend = len(rd_at[-1]), []
    e(rd_at[-1])
    for p in range(len(mf)):
        if p in needs: e(f"s_waitcnt lgkmcnt({min(15, issued - 1 - needs[p])})")
        e(mf[p])
        if p in rd_at: e(rd_at[p]); issued += len(rd_at[p])
        if p in wgaps: emit(e, vq, wops.pop(0))
        q = p - NR - 8
        if q >= 0 and q % 8 == O.elag:
            L = epi(*units[q // 8])
            if O.t2:
                c = L[-8:-4]
                L = L[:-8] + [c[0], c[2], c[1], c[3], "GAP", L[-3], L[-2], L[-1]]
            pend += L
        k = 0
        while pend and k < O.en:
            x = pend.pop(0)
            if x == "GAP":
                if k: break
                continue
            emit(e, vq, x); k += 1
    for x in pend: emit(e, vq, "s_nop 0" if x == "GAP" else x)
    stamp(e)
    e("s_nop 3")
    for x in epi(*units[5], pk=True): emit(e, vq, x)
    stamp(e)
    for x in take(O.pre): emit(e, vq, x)
    stamp(e)
    jitter(e, 2, 52361, True)
    vq.wait({"st"})
    e("s_barrier")
    jitter(e, 2, 12347, True)
    stamp(e)
    vq.issue(masked(f"buffer_atomic_add v{V_ONE}, v{V_SH}, {srd(SRD_H)}, 0 offen sc1"), "sigh")
    e("v_mov_b32 v2, 0")
    poll = f"buffer_load_dword v3, v2, {srd(SRD_H)}, s{S_CP} offen sc1"
    for x in take(max(0, len(wd) - O.pollat)): emit(e, vq, x)
    vq.issue(poll, "poll")
    for x in take(len(wd)): emit(e, vq, x)
    stamp(e)
    if O.pal: e("s_branch L_pg2\n.p2align 12\nL_pg2:")
    vq.wait({"poll"})
    spin(e, tail, "poll", "v_cmp_ne_u32 vcc, 4, v3", poll)
    stamp(e)
    if O.ring:
        phase2_ring(e, vq)
        stamp(e)
        stamp_flush(e, 16 << 20)
        e("L_done:\ns_endpgm")
        e(tail)
        e("L_end:")
        return
    for i in range(O.hd):
        for x in h_loads(i): vq.issue(x, ("h", i))
    V_RW0, V_RR, V_OA, V_OB = 2, 3, 14, 15
    e(f"v_add_u32 v{V_RW0}, s{S_LW}, v{V_L16}\nv_add_u32 v1, {2*SLOT}, v{V_RW0}")
    for j in range(3):
        e(f"""
        s_sub_u32 s{S_T0}, s{S_WAVE}, {j+1}
        s_and_b32 s{S_T0}, s{S_T0}, 3
        s_mul_i32 s{S_T0}, s{S_T0}, 10240
        s_add_u32 s{S_T0}, s{S_T0}, {[0, 5120, 2*SLOT][j]}
        v_add_u32 v{V_RR+j}, s{S_T0}, v{V_L16}
        """)
    e(f"""
    v_and_b32 v{V_OB}, 15, v0
    v_mul_u32_u24 v{V_OB}, 1280, v{V_OB}
    v_bfe_u32 v{V_OA}, v0, 4, 1
    v_lshl_add_u32 v{V_OA}, v{V_OA}, 5, v{V_OB}
    v_lshrrev_b32 v16, 5, v0
    v_lshl_add_u32 v{V_OA}, v16, 4, v{V_OA}
    v_lshrrev_b32 v16, 4, v0
    v_lshl_add_u32 v{V_OB}, v16, 3, v{V_OB}
    """)
    def red_write(j, t):
        va, off = (V_RW0, j * 5120) if j < 2 else (1, 0)
        return f"ds_write_b128 v{va}, {vr(V2_ACC + (j*5+t)*4, 4)} offset:{off + t*1024}"
    for s in range(12):
        vq.wait({("h", s), ("w", s)})
        if O.fine or s == 0: stamp(e)
        hl = h_loads(s + O.hd) if s + O.hd < 12 else []
        order = [(t, j) for t in range(5) for j in range(4)] if s < 11 else [(t, j) for j in range(4) for t in range(5)]
        for k, (t, j) in enumerate(order):
            acc = vr(V2_ACC + (j*5 + t)*4, 4)
            e(f"v_mfma_f32_16x16x32_bf16 {acc}, {ar(20*s + 4*t, 4)}, {vr(V2_H + (s%6)*16 + j*4, 4)}, {acc if s else '0'}")
            if k % 5 == 0 and k // 5 < len(hl): vq.issue(hl[k // 5], ("h", s + O.hd))
            if s == 11 and k >= 8: e(red_write((k - 8) // 5, (k - 8) % 5))
    for k in range(20, 23): e(red_write((k - 8) // 5, (k - 8) % 5))
    stamp(e)
    e("s_waitcnt lgkmcnt(0)\ns_barrier")
    stamp(e)
    for t in range(5):
        for j in range(3):
            e(f"ds_read_b128 {vr(64 + (t*3+j)*4, 4)}, v{V_RR+j} offset:{t*1024}")
    OWN = V2_ACC + 60
    for t in range(5):
        b = 64 + t * 12
        e(f"s_waitcnt lgkmcnt({12 - 3*t})")
        for h in range(2):
            e(f"v_pk_add_f32 {vr(b+2*h,2)}, {vr(b+2*h,2)}, {vr(b+4+2*h,2)}")
            e(f"v_pk_add_f32 {vr(OWN+t*4+2*h,2)}, {vr(OWN+t*4+2*h,2)}, {vr(b+8+2*h,2)}")
        for h in range(2):
            e(f"v_pk_add_f32 {vr(b+2*h,2)}, {vr(b+2*h,2)}, {vr(OWN+t*4+2*h,2)}")
        e(f"v_cvt_pk_bf16_f32 v{144+2*t}, v{b}, v{b+1}")
        e(f"v_cvt_pk_bf16_f32 v{145+2*t}, v{b+2}, v{b+3}")
        if t in (1, 3):
            r = 144 + 2 * (t - 1)
            e(f"s_nop 1\nv_permlane16_swap_b32 v{r}, v{r+2}\nv_permlane16_swap_b32 v{r+1}, v{r+3}")
            e(f"buffer_store_dwordx4 {vr(r,4)}, v{V_OA}, {srd(SRD_O)}, s{S_OO} offen offset:{32*(t-1)} {O.ostore}")
        if t == 4:
            e(f"buffer_store_dwordx2 {vr(152,2)}, v{V_OB}, {srd(SRD_O)}, s{S_OO} offen offset:128 {O.ostore}")
    stamp(e)
    stamp_flush(e, 16 << 20)
    e("L_done:\ns_endpgm")
    e(tail)
    e("L_end:")

HEADER = """
"""

def gen():
    e = E()
    e.L += HEADER.strip().split("\n") + [
            f"; @launch grid=(256,1,1) block=(256,1,1) lds={LDS_BYTES}",
            '.amdgcn_target "amdgcn-amd-amdhsa--gfx950"', ".text", f".globl {KNAME}"] + ([".p2align 12"] if O.pal else []) + [".p2align 8",
            f".type {KNAME},@function", f"{KNAME}:"]
    kernel(e)
    e.L += ['.section .rodata,"a"', ".p2align 6", f".amdhsa_kernel {KNAME}",
            "  .amdhsa_next_free_vgpr 496", "  .amdhsa_next_free_sgpr 100", "  .amdhsa_accum_offset 256",
            "  .amdhsa_group_segment_fixed_size 0", "  .amdhsa_float_denorm_mode_32 3", "  .amdhsa_kernarg_size 56", "  .amdhsa_user_sgpr_count 2",
            "  .amdhsa_user_sgpr_kernarg_segment_ptr 1", "  .amdhsa_system_sgpr_workgroup_id_x 1", ".end_amdhsa_kernel"]
    return add_warm_stubs(e.text()) if O.warm else e.text()

def add_warm_stubs(txt):
    import subprocess, re, tempfile, os
    L = txt.split("\n")
    for k in range(2):
        T = list(L)
        for j in range(k, 2): T.insert(T.index("L_done:"), f"L_warm{j}:")
        with tempfile.TemporaryDirectory() as d:
            open(d + "/a.s", "w").write("\n".join(T))
            subprocess.run(["clang", "-x", "assembler", "-target", "amdgcn-amd-amdhsa", "-mcpu=gfx950", "-c", "-g", d + "/a.s", "-o", d + "/a.o"], check=True)
            dis = subprocess.run(["llvm-objdump", "-d", "-l", "--mcpu=gfx950", d + "/a.o"], capture_output=True, text=True).stdout
        line, addr = None, {}
        for l in dis.split("\n"):
            m = re.match(r"; .*a\.s:(\d+)", l)
            if m: line = int(m.group(1)); continue
            m = re.search(r"// ([0-9A-F]{12}):", l)
            if m and line is not None and line not in addr: addr[line] = int(m.group(1), 16)
        p1 = T.index("L_pg1:") + 1 if "L_pg1:" in T else None
        base = addr[p1 + 1] if p1 else 0x1000 - 0x300
        target = base + 0x1000 * (k + 1)
        ln = min(n for n, a in addr.items() if a >= target and n > (p1 or 0))
        i = ln - 1
        while "v_mfma" not in L[i - 1]: i += 1
        L[i:i] = [f"L_warm{k}:", "    s_cbranch_execz L_warm_ret"]
    return "\n".join(L)

if __name__ == "__main__":
    out = sys.argv[1]
    for a in sys.argv[2:]:
        k, _, v = a.partition("=")
        cur = getattr(O, k)
        setattr(O, k, (v == "1") if isinstance(cur, bool) else type(cur)(v))
    open(out, "w").write(gen())
```

```python
import sys

S, D, F = 2048, 640, 1536
X_BYTES = S * D * 2
W_BYTES = D * F * 2
KNAME = "standalone__glu_gated_reglu__prompt_kernel"
CNT_OFF = (8 << 20) + 1966080
WP_OFF = 8 << 20
WS_BYTES = 32 << 20

class Opt:
    stamps = False
    smin = False
    m162 = True
    nt0 = 0
    ntr = False
    fine = False
    pro = False
    cyc = False
    G = 10
    hstore = "sc1"
    ostore = ""
    b7 = 10
    b8 = 6
    pre = 12
    pollat = 10
    cpre = True
    cpn = 32
    elag = 2
    hd = 3
    w0 = 1.0
    wd = 2.0
    en = 3
    rpa = 1
    nrest = 10
    norp = False
    lock = 0
    rpe = 0
    wr = 64
    wstep = 2
    t5 = True
    t6 = True
    t2 = True
    sites = ""
    tlb = 0
    pal = False
    warm = False
    slowf = 0
    slowm = 0x3084
    emu = False
    oob = 0
    pret = False
    halft = 0
    snake = True
    wg9 = ""
    casc = ""
    cg0 = 2
    jit = 0
    pair = 1
    dtab = ""
    z240 = False
    m84 = False
    rpmask = 0xffff
    map2 = 84
    touch = 0
    btab = ""
    t3 = False
    late = False
    ring = True
    hn = 8
    rw0 = 24
    rbar = 46
    rpg = 1
    chk0 = True
    ex1 = True
    rlag = 1
    stg = 46
    pg = 0
    nodma = False
    nobar = False
O = Opt()

class E:
    def __init__(self): self.L = []
    def __call__(self, s):
        if isinstance(s, (list, tuple)):
            for x in s: self(x)
            return
        for ln in s.split("\n"):
            ln = ln.strip()
            if ln: self.L.append(ln if ln.endswith(":") else "    " + ln)
    def text(self): return "\n".join(self.L) + "\n"

def vr(a, n): return f"v[{a}:{a+n-1}]"
def ar(a, n): return f"a[{a}:{a+n-1}]"
def lines(s): return [x.strip() for x in s.strip().split("\n") if x.strip()]

SRD_X, SRD_G, SRD_U, SRD_D, SRD_O, SRD_H, SRD_B = 4, 8, 12, 16, 20, 24, 28
def srd(n): return f"s[{n}:{n+3}]"
S_WAVE = 32
S_M, S_F, S_R, S_C = 33, 34, 35, 36
S_SX, S_SW = 37, 38
S_MX, S_MG = 39, 40
S_GRP = 42
S_ROT = 43
S_SM, S_SO = 84, 94
S_SW2 = 44
S_TO = 45
S_MR = 41
S_T0, S_T1, S_T2, S_T3 = 47, 48, 49, 46
S_HST = 50
S_LW = 55
S_OO = 56
S_CP = 58
S_DS = 59
S_RP0, S_RP1 = 61, 62
S_P = 64
S_WB = 78
S_PC = 82
S_ST, S_STI = 90, 92
S_SPIN = 93

SLOT = 40960
LDS_BYTES = 163840
RPB = 3 * SLOT

V_L16, V_L16B = 6, 7
V_DBG, V_ONE = 8, 13
V_RD, V_RR0, V_RT = 9, 11, 16
V_FL, V_SG, V_SH = 24, 25, 26
V_ST = 31
V_DX, V_DG = 40, 44
V_RX, V_RW = (32, 48), (34, 50)
V_HOFF, V_CHK, V_CHA = 57, 58, 59
V2_HL = 60
V_A, V_B, V_ACC1 = 64, 112, 160
V2_H, V2_ACC = 64, 160

def clk(): return "s_memtime" if O.cyc else "s_memrealtime"
def stamp_init(e):
    if not O.stamps: return
    e(f"{clk()} s[{S_ST}:{S_ST+1}]\ns_mov_b32 s{S_STI}, 1\ns_waitcnt lgkmcnt(0)\nv_mov_b32 v{V_ST}, s{S_ST}")
def stamp(e, force=False):
    if not O.stamps or (O.smin and not force): return
    e(f"""{clk()} s[{S_ST}:{S_ST+1}]
    v_cmp_eq_u32 vcc, s{S_STI}, v0
    s_add_u32 s{S_STI}, s{S_STI}, 1
    s_waitcnt lgkmcnt(0)
    v_mov_b32 v{V_ST-1}, s{S_ST}
    v_cndmask_b32 v{V_ST}, v{V_ST}, v{V_ST-1}, vcc""")
def stamp_flush(e, base):
    if not O.stamps: return
    e("s_waitcnt vmcnt(0)")
    stamp(e, True)
    e(f"""s_lshl_b32 s{S_ST}, s2, 2
    s_add_u32 s{S_ST}, s{S_ST}, s{S_WAVE}
    s_lshl_b32 s{S_ST}, s{S_ST}, 8
    s_add_u32 s{S_ST}, s{S_ST}, {base}
    v_lshlrev_b32 v{V_ST-1}, 2, v0
    buffer_store_dword v{V_ST}, v{V_ST-1}, {srd(SRD_H)}, s{S_ST} offen""")

class VQ:
    def __init__(self, e): self.e, self.q = e, []
    def issue(self, op, tag): self.e(op); self.q.append(tag)
    def count(self, tags):
        idx = [i for i, t in enumerate(self.q) if t in tags]
        assert all(t in self.q for t in tags) or O.nodma, tags
        n = len(self.q) - 1 - max(idx, default=-1)
        assert n < 64
        return n
    def wait(self, tags, extra=""): self.e(f"s_waitcnt vmcnt({self.count(tags)}) {extra}".strip())

class Op:
    def __init__(self, ins, tag, pre=()): self.ins, self.tag, self.pre = ins, tag, list(pre)
def masked(ins, mask=1):
    return f"s_mov_b64 exec, {mask}\n{ins}\ns_mov_b64 exec, -1" if O.ex1 else ins
def emit(e, vq, x):
    if isinstance(x, Op):
        e(x.pre)
        if x.pre and " m0," in x.pre[-1]: e("s_nop 0")
        vq.issue(x.ins, x.tag)
    else: e(x)

def nib(L): return sum(v << (4 * i) for i, v in enumerate(L))
def tile1():
    if O.m84:
        tab = [[2, 0, 1, 3], [7, 4, 5, 6], [8, 9, 10, 11], [12, 13, 14, 15]]
        lo = nib([tab[g][k] for k in range(2) for g in range(4)]); hi = nib([tab[g][k] for k in range(2, 4) for g in range(4)])
        return f"""s_and_b32 s{S_T0}, s2, 3
    s_bfe_u32 s{S_T1}, s2, 0x10003
    s_lshl2_add_u32 s{S_T2}, s{S_T1}, s{S_T0}
    s_lshl_b32 s{S_T2}, s{S_T2}, 2
    s_bitcmp1_b32 s2, 4
    s_mov_b32 s{S_F}, {lo:#x}
    s_cselect_b32 s{S_F}, {hi:#x}, s{S_F}
    s_lshr_b32 s{S_F}, s{S_F}, s{S_T2}
    s_and_b32 s{S_F}, s{S_F}, 15
    s_mul_i32 s{S_T0}, s{S_T0}, 3
    s_bfe_u32 s{S_T1}, s2, 0x20003
    s_add_u32 s{S_T0}, s{S_T0}, s{S_T1}
    s_lshr_b32 s{S_T2}, s2, 5
    s_bfe_u32 s{S_T1}, s2, 0x10002
    s_lshl3_add_u32 s{S_M}, s{S_T1}, s{S_T2}
    s_mul_i32 s{S_T2}, s{S_T2}, 5
    s_lshr_b32 s{S_T2}, s{S_T2}, 2
    s_add_u32 s{S_T1}, s{S_T1}, s{S_T2}
    s_sub_u32 s{S_T1}, s{S_T1}, s{S_M}"""
    if O.pair:
        d = [int(c) for c in O.dtab] if O.dtab else [5, O.pair, 6, O.pair, 5, 5, O.pair, O.pair]
        return f"""s_lshr_b32 s{S_M}, s2, 4
    s_and_b32 s{S_T0}, s2, 7
    s_lshl_b32 s{S_T2}, s{S_T0}, 2
    s_bitcmp1_b32 s2, 3
    s_mov_b32 s{S_F}, {nib([0, 2, 4, 7, 8, 10, 12, 13]):#x}
    s_cselect_b32 s{S_F}, {nib([1, 3, 5, 6, 9, 11, 14, 15]):#x}, s{S_F}
    s_cselect_b32 s{S_T1}, {nib(d):#x}, 0
    s_lshr_b32 s{S_F}, s{S_F}, s{S_T2}
    s_and_b32 s{S_F}, s{S_F}, 15
    s_lshr_b32 s{S_T1}, s{S_T1}, s{S_T2}
    s_and_b32 s{S_T1}, s{S_T1}, 15""" + (f"""
    s_lshr_b32 s{S_T0}, {nib([int(c) for c in O.btab]):#x}, s{S_T2}
    s_and_b32 s{S_T0}, s{S_T0}, 15""" if O.btab else "")
    if O.m162:
        return f"""s_lshr_b32 s{S_M}, s2, 4
    s_and_b32 s{S_T0}, s2, 7
    s_bfe_u32 s{S_T1}, s2, 0x10003
    s_lshl1_add_u32 s{S_F}, s{S_T0}, s{S_T1}"""
    return f"""s_and_b32 s{S_T0}, s2, 4
    s_lshl_b32 s{S_T0}, s{S_T0}, 1
    s_lshr_b32 s{S_T1}, s2, 5
    s_add_u32 s{S_M}, s{S_T0}, s{S_T1}
    s_and_b32 s{S_T0}, s2, 3
    s_bfe_u32 s{S_T1}, s2, 0x20003
    s_lshl2_add_u32 s{S_F}, s{S_T0}, s{S_T1}"""

def slow_m():
    if not O.slowf: return f"s_add_u32 s{S_T0}, s{S_M}, s{S_T0}"
    pre = f"s_and_b32 s{S_T2}, s{S_M}, 1\ns_mul_i32 s{S_T2}, s{S_T2}, 5\n" if O.slowf == 2 else f"s_mov_b32 s{S_T2}, 0\n"
    return pre + f"s_bitcmp1_b32 {O.slowm}, s{S_F}\ns_cselect_b32 s{S_T2}, s{S_T2}, s{S_M}\ns_add_u32 s{S_T0}, s{S_T2}, s{S_T0}"

def setup_x(e):
    e(f"""
    s_load_dwordx2 s[{SRD_X}:{SRD_X+1}], s[0:1], 0
    s_load_dwordx2 s[{SRD_G}:{SRD_G+1}], s[0:1], 8
    s_load_dwordx2 s[{SRD_U}:{SRD_U+1}], s[0:1], 16
    """)
    if O.cpre:
        e(f"""
        s_getpc_b64 s[{S_PC}:{S_PC+1}]
        L_pc:
        s_bfe_u32 s{S_T0}, s2, 0x20003
        s_mul_i32 s{S_T0}, s{S_T0}, {O.cpn}
        v_add_lshl_u32 v2, v0, s{S_T0}, 7
        v_min_u32 v2, L_end - L_pc - 4, v2
        v_mov_b32 v3, 0
        v_lshl_add_u64 v[2:3], v[2:3], 0, s[{S_PC}:{S_PC+1}]
        v_cmp_gt_u32 vcc, {O.cpn}, v0
        s_and_saveexec_b64 s[{S_PC+4}:{S_PC+5}], vcc
        s_cbranch_execz L_nocp
        global_load_dword v5, v[2:3], off
        L_nocp:
        s_mov_b64 exec, -1
        """)
    if O.lock: O.G = 10 - O.lock
    mg = (65536 + O.G - 1) // O.G
    e(f"""
    v_lshrrev_b32 v1, 6, v0
    v_and_b32 v0, 63, v0
    v_readfirstlane_b32 s{S_WAVE}, v1
    {tile1()}
    {f"s_mul_i32 s{S_T1}, s{S_T1}, {1 if O.pair or O.m84 else O.G // 2}{chr(10)}{slow_m()}{chr(10)}s_add_u32 s{S_T0}, s{S_T0}, s{S_T1}" if O.m162 and (O.G == 10 or O.lock) else f"s_add_u32 s{S_T0}, s{S_M}, s{S_F}"}
    s_mul_i32 s{S_T1}, s{S_T0}, {mg}
    s_lshr_b32 s{S_T1}, s{S_T1}, 16
    s_mul_i32 s{S_T1}, s{S_T1}, {O.G}
    s_sub_u32 s{S_T0}, s{S_T0}, s{S_T1}
    """)
    if O.lock: e(f"s_lshl_b32 s{S_ROT}, s{S_T0}, 7\ns_movk_i32 s{S_SX}, {128 * (10 - O.lock)}")
    elif 10 % O.G == 0: e(f"s_mul_i32 s{S_SX}, s{S_T0}, {1280 // O.G}")
    else: e(f"s_mul_i32 s{S_T0}, s{S_T0}, {10 * mg}\ns_lshr_b32 s{S_SX}, s{S_T0}, 16\ns_lshl_b32 s{S_SX}, s{S_SX}, 7")
    e(f"""
    v_lshrrev_b32 v2, 3, v0
    v_mul_u32_u24 v3, 1280, v2
    v_lshrrev_b32 v4, 4, v0
    v_and_b32 v1, 7, v0
    v_xor_b32 v4, v4, v1
    v_lshl_add_u32 v{V_DX}, v4, 4, v3
    v_xor_b32 v{V_DX+1}, 64, v{V_DX}
    v_add_u32 v{V_DX+1}, {10240-1024}, v{V_DX+1}
    v_add_u32 v{V_DX+2}, {2*(10240-1024)}, v{V_DX}
    v_add_u32 v{V_DX+3}, {2*(10240-1024)}, v{V_DX+1}
    s_lshl2_add_u32 s{S_T0}, s{S_M}, s{S_WAVE}
    s_mov_b32 s{SRD_X+2}, 40960
    s_mul_i32 s{S_T0}, s{S_T0}, s{SRD_X+2}
    s_mov_b32 s{SRD_X+3}, 0x262144
    s_lshl_b32 s{S_MX}, s{S_WAVE}, 12
    s_mov_b32 m0, s{S_MX}
    s_waitcnt lgkmcnt(0)
    """)
    if O.pret:
        e(f"""
        s_mov_b32 s{SRD_G+2}, 4
        s_mov_b32 s{SRD_G+3}, 0x262144
        s_mov_b32 s{SRD_U+2}, 4
        s_mov_b32 s{SRD_U+3}, 0x262144
        s_mov_b64 exec, 1
        buffer_load_dword v28, off, {srd(SRD_G)}, 0
        buffer_load_dword v29, off, {srd(SRD_U)}, 0
        s_mov_b64 exec, -1
        """)
    e(f"""
    s_add_u32 s{SRD_X}, s{SRD_X}, s{S_T0}
    s_addc_u32 s{SRD_X+1}, s{SRD_X+1}, 0
    """)

def setup_w(e):
    e(f"""
    s_load_dwordx2 s[{SRD_D}:{SRD_D+1}], s[0:1], 24
    s_load_dwordx2 s[{SRD_O}:{SRD_O+1}], s[0:1], 32
    s_load_dwordx2 s[{SRD_B}:{SRD_B+1}], s[0:1], 40
    s_load_dwordx2 s[{SRD_H}:{SRD_H+1}], s[0:1], 48
    s_cmp_lt_u32 s{S_WAVE}, 2
    s_cselect_b32 s{SRD_G}, s{SRD_G}, s{SRD_U}
    s_cselect_b32 s{SRD_G+1}, s{SRD_G+1}, s{SRD_U+1}
    s_and_b32 s{S_T2}, s{S_WAVE}, 1
    s_mul_i32 s{S_T0}, s{S_T2}, {16*3072}
    s_mul_i32 s{S_T1}, s{S_F}, 192
    s_add_u32 s{S_T1}, s{S_T1}, s{S_T0}
    s_add_u32 s{SRD_G}, s{SRD_G}, s{S_T1}
    s_addc_u32 s{SRD_G+1}, s{SRD_G+1}, 0
    s_sub_u32 s{SRD_G+2}, {W_BYTES}, s{S_T1}
    s_mov_b32 s{SRD_G+3}, 0x262144
    s_mul_i32 s{S_SW}, s{S_SX}, 1536
    s_add_u32 s{S_SW2}, s{S_SW}, {32*3072}
    s_lshr_b32 s{S_T1}, s{S_WAVE}, 1
    s_lshl2_add_u32 s{S_MG}, s{S_T1}, s{S_T2}
    s_mul_i32 s{S_MG}, s{S_MG}, 3072
    s_movk_i32 s{S_T0}, 2880
    v_lshlrev_b32 v{V_L16}, 4, v0
    v_mul_u32_u24 v2, 5462, v0
    """)
    for j in range(3):
        if j: e(f"v_add_u32 v2, {64*5462}, v2")
        e(f"""
        v_lshrrev_b32 v3, 16, v2
        v_lshrrev_b32 v4, 14, v2
        v_and_b32 v4, 32, v4
        v_xor_b32 v4, v4, v{V_L16}
        v_mad_u32_u24 v{V_DG+j}, v3, s{S_T0}, v4
        """)
        if O.emu:
            e(f"""
            v_add_u32 v4, {1024*j}, v{V_DG+j}
            v_and_b32 v4, 127, v4
            v_mul_u32_u24 v3, 3072, v3
            v_add_u32 v4, v4, v3
            v_subrev_u32 v{37+j}, {1024*j}, v4
            s_and_b32 s{SRD_G}, s{SRD_G}, 0xffffff80
            """)

def stage_ops(st):
    b = (st % 3) * SLOT
    ops = []
    for j in range(4):
        ops.append(Op(f"buffer_load_dwordx4 v{V_DX+j}, {srd(SRD_X)}, s{S_SX} offen offset:{1024*j} lds", ("s", st),
                      [f"s_add_u32 m0, s{S_MX}, {b}"] if j == 0 else []))
    for g in range(2):
        for j in range(3):
            ops.append(Op(f"buffer_load_dwordx4 v{V_DG+j}, {srd(SRD_G)}, s{(S_SW, S_SW2)[g]} offen offset:{1024*j} lds", ("s", st) if g or st else ("s0a",),
                          [f"s_add_u32 m0, s{S_MG}, {b + 16384 + 6144*g}"] if j == 0 else []))
    return ops

def adv_src(nxt):
    if nxt <= O.lock:
        return [f"s_mov_b32 s{S_SX}, s{S_ROT}" if nxt == O.lock else f"s_add_u32 s{S_SX}, s{S_SX}, 128", "s_nop 0", "s_nop 0", f"s_mul_i32 s{S_SW}, s{S_SX}, 1536"]
    return lines(f"""
    s_add_u32 s{S_SX}, s{S_SX}, 128
    s_cmpk_eq_u32 s{S_SX}, {128 * (10 - O.lock)}
    s_cselect_b32 s{S_SX}, 0, s{S_SX}
    s_mul_i32 s{S_SW}, s{S_SX}, 1536
    s_add_u32 s{S_SW2}, s{S_SW}, {32*3072}
    """)

def setup_reads(e):
    e(f"""
    v_and_b32 v2, 15, v0
    v_lshlrev_b32 v{V_DBG}, 2, v2
    s_lshr_b32 s{S_T0}, s{S_WAVE}, 1
    s_lshl_b32 s{S_T0}, s{S_T0}, 13
    v_lshlrev_b32 v3, 7, v2
    v_add_u32 v3, s{S_T0}, v3
    v_bfe_u32 v4, v0, 1, 3
    v_lshrrev_b32 v1, 4, v0
    v_xor_b32 v4, v4, v1
    v_lshl_add_u32 v{V_RX[0]}, v4, 4, v3
    v_xor_b32 v{V_RX[0]+1}, 64, v{V_RX[0]}
    v_bfe_u32 v4, v0, 2, 2
    v_lshl_add_u32 v3, v1, 3, v4
    v_mul_u32_u24 v3, 192, v3
    v_and_b32 v4, 3, v0
    v_lshl_add_u32 v3, v4, 3, v3
    v_add_u32 v3, 16384, v3
    v_and_b32 v2, 1, v1
    s_and_b32 s{S_T0}, s{S_WAVE}, 1
    s_mul_i32 s{S_T0}, s{S_T0}, 3
    """)
    for a in range(3):
        e(f"""
        s_add_u32 s{S_T1}, s{S_T0}, {a}
        v_xor_b32 v4, s{S_T1}, v2
        v_lshl_add_u32 v{V_RW[0]+a}, v4, 5, v3
        """)
    for i in range(5): e(f"v_add_u32 v{V_RX[1]+i}, {2*SLOT}, v{V_RX[0]+i}")

def rpmask_code():
    if O.rpmask == 0xffff: return ""
    return f"""s_bitcmp1_b32 {O.rpmask}, s{S_F}
    s_cselect_b32 s{S_T0}, 0, s{SRD_D+2}
    v_add_u32 v{V_RD}, s{S_T0}, v{V_RD}
    v_add_u32 v{V_RD+1}, s{S_T0}, v{V_RD+1}"""

def setup_repack(e):
    P, T = S_T3, S_T1
    e(f"""
    s_mul_i32 s{S_T0}, s2, 13108
    s_lshr_b32 s{P}, s{S_T0}, 16
    s_mul_i32 s{T}, s{P}, 5
    s_sub_u32 s{T}, s2, s{T}
    s_mov_b32 s{SRD_D+2}, {W_BYTES}
    s_mov_b32 s{SRD_D+3}, 0x262144
    v_lshrrev_b32 v2, 4, v0
    v_bfe_u32 v3, v0, 1, 3
    v_xor_b32 v3, v3, v2
    s_and_b32 s{S_T0}, s{S_WAVE}, 1
    s_lshl_b32 s{S_T0}, s{S_T0}, 2
    v_xor_b32 v3, s{S_T0}, v3
    v_and_b32 v4, 1, v0
    v_lshlrev_b32 v4, 4, v4
    v_mul_u32_u24 v2, 1280, v2
    v_add_u32 v2, v2, v4
    v_lshl_add_u32 v{V_RD}, v3, 5, v2
    s_lshl2_add_u32 s{S_T0}, s{P}, s{S_WAVE}
    s_mul_i32 s{S_T0}, s{S_T0}, {8*1280}
    s_lshl_b32 s{S_T2}, s{T}, 8
    s_add_u32 s{S_T0}, s{S_T0}, s{S_T2}
    v_add_u32 v{V_RD}, s{S_T0}, v{V_RD}
    v_add_u32 v{V_RD+1}, {4*1280-1024}, v{V_RD}
    s_bfe_u32 s{S_GRP}, s2, 0x10005
    {rpmask_code()}
    s_lshl_b32 s{S_MR}, s{S_WAVE}, 11
    s_add_u32 s{S_MR}, s{S_MR}, {RPB}
    s_lshl_b32 s{T}, s{T}, 3
    s_mul_i32 s{S_T0}, s{P}, 5462
    s_lshr_b32 s{S_T0}, s{S_T0}, 16
    s_add_u32 s{S_T0}, s{S_T0}, s{T}
    s_lshl_b32 s{S_T0}, s{S_T0}, 8
    s_add_u32 s{S_T0}, s{S_T0}, {CNT_OFF + 1024}
    s_cmp_eq_u32 s{S_WAVE}, 0
    s_cselect_b32 s{S_T0}, s{S_T0}, s{SRD_H+2}
    s_cmp_lt_u32 s2, 240
    s_cselect_b32 s{S_T0}, s{S_T0}, s{SRD_H+2}
    v_lshl_add_u32 v{V_SG}, v0, 25, s{S_T0}
    s_lshl_b32 s{S_T2}, s{S_WAVE}, 1
    s_add_u32 s{T}, s{T}, s{S_T2}
    s_mul_i32 s{P}, s{P}, 5
    """)
    for u, dst in ((0, S_RP0), (1, S_RP1)):
        e(f"""
        s_add_u32 s{S_T0}, s{T}, {u}
        s_mul_i32 s{dst}, s{S_T0}, 13108
        s_lshr_b32 s{dst}, s{dst}, 16
        s_mul_i32 s{dst}, s{dst}, 235
        s_add_u32 s{dst}, s{dst}, s{S_T0}
        s_add_u32 s{dst}, s{dst}, s{P}
        s_lshl_b32 s{dst}, s{dst}, 10
        s_add_u32 s{dst}, s{dst}, {WP_OFF}
        s_cmp_lt_u32 s2, 240
        s_cselect_b32 s{dst}, s{dst}, s{SRD_H+2}
        """)
    e(f"""
    v_bfe_u32 v2, v0, 4, 1
    v_bfe_u32 v3, v0, 2, 2
    v_lshl_add_u32 v2, v2, 2, v3
    v_lshrrev_b32 v4, 4, v0
    v_lshl_add_u32 v3, v4, 3, v3
    v_lshlrev_b32 v3, 8, v3
    v_and_b32 v4, 3, v0
    v_lshl_add_u32 v3, v4, 3, v3
    v_add_u32 v3, {RPB}, v3
    v_xor_b32 v2, s{S_T2}, v2
    v_lshl_add_u32 v{V_RR0}, v2, 5, v3
    v_xor_b32 v{V_RR0+1}, 32, v{V_RR0}
    """)

def tile2():
    if O.map2 == 48:
        return f"""s_and_b32 s{S_T0}, s2, 7
    s_lshr_b32 s{S_T1}, s2, 6
    s_lshl2_add_u32 s{S_R}, s{S_T0}, s{S_T1}
    s_bfe_u32 s{S_C}, s2, 0x30003"""
    if O.map2 == 162:
        return f"""s_and_b32 s{S_T0}, s2, 4
    s_lshr_b32 s{S_T1}, s2, 4
    s_lshl2_add_u32 s{S_R}, s{S_T0}, s{S_T1}
    s_and_b32 s{S_T0}, s2, 3
    s_bfe_u32 s{S_C}, s2, 0x10003
    s_lshl1_add_u32 s{S_C}, s{S_T0}, s{S_C}"""
    return f"""s_and_b32 s{S_T0}, s2, 6
    s_lshr_b32 s{S_T1}, s2, 5
    s_lshl2_add_u32 s{S_R}, s{S_T0}, s{S_T1}
    s_and_b32 s{S_T0}, s2, 1
    s_bfe_u32 s{S_C}, s2, 0x20003
    s_lshl2_add_u32 s{S_C}, s{S_T0}, s{S_C}"""

def setup_p2(e):
    e(f"""
    {tile2()}
    s_mul_i32 s{S_LW}, s{S_WAVE}, 10240
    s_lshl2_add_u32 s{S_T0}, s{S_C}, s{S_WAVE}
    s_mul_i32 s{S_T0}, s{S_T0}, {12*5120}
    s_add_u32 s{S_WB}, s{S_T0}, {WP_OFF}
    v_add_u32 v{V_L16B}, 4096, v{V_L16}
    v_and_b32 v2, 1, v0
    s_mul_i32 s{S_T0}, s{S_C}, 5
    v_lshl_add_u32 v2, v2, 2, s{S_T0}
    v_and_b32 v2, 0x38, v2
    s_add_u32 s{S_T0}, s{S_WAVE}, {4 + (CNT_OFF >> 8)}
    v_add_lshl_u32 v{V_CHA}, v2, s{S_T0}, 8
    s_mov_b32 s{SRD_O+2}, {X_BYTES}
    s_mov_b32 s{SRD_O+3}, 0x262144
    s_lshl2_add_u32 s{S_T0}, s{S_R}, s{S_WAVE}
    s_mul_i32 s{S_T1}, s{S_T0}, 49152
    s_mul_i32 s{S_T2}, s{S_R}, 26
    s_lshr_b32 s{S_T2}, s{S_T2}, 8
    s_lshl_b32 s{S_T2}, s{S_T2}, 17
    s_add_u32 s{S_T1}, s{S_T1}, s{S_T2}
    v_add_u32 v2, s{S_T1}, v{V_L16}
    s_mul_i32 s{S_T0}, s{S_T0}, {16*1280}
    s_mul_i32 s{S_T1}, s{S_C}, 160
    s_add_u32 s{S_OO}, s{S_T0}, s{S_T1}
    """)
    for j in range(4):
        e(f"""
        s_add_u32 s{S_T0}, s{S_WAVE}, {j+1}
        s_and_b32 s{S_T0}, s{S_T0}, 3
        s_lshl_b32 s{S_T0}, s{S_T0}, 10
        v_add_u32 v{V2_HL+j}, s{S_T0}, v2
        """)
    e(f"""
    s_lshr_b32 s{S_T1}, s{S_F}, 2
    s_lshl3_add_u32 s{S_T0}, s{S_M}, s{S_T1}
    s_lshl_b32 s{S_T0}, s{S_T0}, 8
    s_add_u32 s{S_T0}, s{S_T0}, {CNT_OFF}
    s_cmp_eq_u32 s{S_WAVE}, 0
    s_cselect_b32 s{S_T0}, s{S_T0}, s{SRD_H+2}
    v_lshl_add_u32 v{V_SH}, v0, 25, s{S_T0}
    s_lshr_b32 s{S_T0}, s{S_R}, 1
    s_lshl3_add_u32 s{S_T0}, s{S_T0}, s{S_WAVE}
    s_lshl_b32 s{S_T0}, s{S_T0}, 8
    s_add_u32 s{S_CP}, s{S_T0}, {CNT_OFF}
    v_bfe_u32 v2, v0, 4, 1
    v_lshlrev_b32 v2, 10, v2
    v_lshrrev_b32 v3, 5, v0
    v_lshl_add_u32 v2, v3, 8, v2
    v_and_b32 v3, 15, v0
    v_lshl_add_u32 v{V_HOFF}, v3, 4, v2
    s_lshr_b32 s{S_T0}, s{S_WAVE}, 1
    s_lshl1_add_u32 s{S_T0}, s{S_M}, s{S_T0}
    s_mul_i32 s{S_T2}, s{S_T0}, 26
    s_lshr_b32 s{S_T2}, s{S_T2}, 8
    s_lshl_b32 s{S_T2}, s{S_T2}, 17
    s_mul_i32 s{S_T0}, s{S_T0}, 196608
    s_add_u32 s{S_T0}, s{S_T0}, s{S_T2}
    s_and_b32 s{S_T1}, s{S_WAVE}, 1
    s_lshl1_add_u32 s{S_T1}, s{S_F}, s{S_T1}
    s_mul_i32 s{S_T1}, s{S_T1}, 3
    """)
    for a in range(3):
        e(f"""
        s_add_u32 s{S_T2}, s{S_T1}, {a}
        s_and_b32 s{S_HST+a}, s{S_T2}, 1
        s_mul_i32 s{S_HST+a}, s{S_HST+a}, {512 - 2048}
        s_lshl_b32 s{S_T2}, s{S_T2}, 11
        s_add_u32 s{S_HST+a}, s{S_HST+a}, s{S_T2}
        s_add_u32 s{S_HST+a}, s{S_HST+a}, s{S_T0}
        """)
    for i in range(12): e(f"s_mov_b32 s{S_P+i}, {4096*i}")

def slot_addr(st): return (1, 0) if st % 3 == 2 else (0, (st % 3) * SLOT)
def rdB(st, ks, j, buf=None):
    buf = ks if buf is None else buf
    k, off = slot_addr(st)
    return f"ds_read_b128 {vr(V_B + buf*16 + j*4, 4)}, v{V_RX[k]+ks} offset:{off + j*2048}"
def rdA(st, ks, t):
    a, gu = t >> 1, t & 1
    k, off = slot_addr(st)
    return [f"ds_read_b64_tr_b16 {vr(V_A + ks*24 + t*4 + half*2, 2)}, v{V_RW[k]+a} offset:{off + gu*12288 + (32*ks + 4*half)*192}" for half in range(2)]
def p1_reads(st, ks):
    return [rdB(st, ks, 0)] + rdA(st, ks, 0) + [rdB(st, ks, j) for j in (1, 2, 3)] + [x for t in range(1, 6) for x in rdA(st, ks, t)]
def acc1(t, j): return V_ACC1 + (t*4 + j)*4
def mf1(ks, t, j, buf=None, first=False):
    buf = ks if buf is None else buf
    acc = vr(acc1(t, j), 4)
    return f"v_mfma_f32_16x16x32_bf16 {acc}, {vr(V_A + ks*24 + t*4, 4)}, {vr(V_B + buf*16 + j*4, 4)}, {'0' if first else acc}"

def jord(t): return range(3, -1, -1) if O.snake and t & 1 else range(4)
DMA_GAPS = [2, 7, 12, 17, 22, 26, 31, 35, 39, 43]

def body(e, vq, st, ops, fill, need, gaps):
    NR = O.nrest
    s0 = [mf1(0, t, j, first=(st == 0)) for t in range(6) for j in jord(t)]
    s1 = [mf1(1, t, j) for t in range(6) for j in jord(t)]
    mf = s1[24-NR:] + s0 + s1[:24-NR]
    rd = p1_reads(st, 0) + p1_reads(st, 1)
    last = {NR: 3, NR + 2: 5, NR + 4: 9, NR + 12: 15, NR + 24: 16 + 5 + 2 * ((24 - NR - 1) // 4)}
    at = dict(zip(gaps, ops))
    p0 = NR if st == 0 else 0
    nrd = p0 + 1
    e(rd[:nrd])
    for g in gaps:
        if g < p0 and g in at: emit(e, vq, at[g])
    for p in range(p0, 48):
        if p in last: e(f"s_waitcnt lgkmcnt({min(15, nrd - 1 - last[p])})")
        e(mf[p])
        if nrd < 32: e(rd[nrd]); nrd += 1
        if p in at: vq.issue(at[p].ins, at[p].tag)
        if p + 1 in at: e(at[p + 1].pre)
        for x in fill.get(p, []): emit(e, vq, x)
    vq.wait(need, "lgkmcnt(0)")
    if not O.nobar: e("s_barrier")

def place(fill, L, p0):
    L = list(L)
    for p in range(p0, 48):
        if p in (44, 45) or p + 1 in DMA_GAPS and DMA_GAPS.index(p + 1) in (0, 4, 7): continue
        room = 3 - (1 if p < 31 else 0) - (1 if p in DMA_GAPS else 0) - len(fill.get(p, []))
        nv, out = 0, []
        while L and room > 0:
            if L[0].startswith("v_"):
                if nv: break
                nv = 1
            n = 1
            if L[0].startswith("s_cmp"):
                while n < len(L) and L[n].startswith("s_cselect"): n += 1
            out += L[:n]; del L[:n]; room -= n
        if out: fill.setdefault(p, []); fill[p] = fill[p] + out
    assert not L, len(L)

def spin(e, tail, name, cmp, reload):
    e(f"{cmp}\ns_cbranch_vccnz L_{name}\nL_{name}_ok:")
    tail += lines(f"""
    L_{name}:
    s_mov_b32 s{S_SPIN}, 0
    L_{name}_1:
    {reload}
    s_add_u32 s{S_SPIN}, s{S_SPIN}, 1
    s_cmp_gt_u32 s{S_SPIN}, 262144
    s_cbranch_scc1 L_{name}_ok
    s_waitcnt vmcnt(0)
    {cmp}
    s_cbranch_vccnz L_{name}_1
    s_branch L_{name}_ok
    """)

def wd_ops(i):
    return [Op(f"buffer_load_dwordx4 {ar(20*i + 4*t, 4)}, v{V_L16 if t < 4 else V_L16B}, {srd(SRD_H)}, s{S_DS} offen offset:{1024*(t&3)} sc1",
               ("w", i), [f"s_add_u32 s{S_DS}, s{S_WB}, {5120*i}"] if t == 0 else []) for t in range(5)]
def h_loads(i):
    return [f"buffer_load_dwordx4 {vr(V2_H + (i%6)*16 + j*4, 4)}, v{V2_HL+j}, {srd(SRD_H)}, s{S_P+i} offen sc1" for j in range(4)]

def out_addr(e, V_OA, V_OB):
    e(f"""
    v_and_b32 v{V_OB}, 15, v0
    v_mul_u32_u24 v{V_OB}, 1280, v{V_OB}
    v_bfe_u32 v{V_OA}, v0, 4, 1
    v_lshl_add_u32 v{V_OA}, v{V_OA}, 5, v{V_OB}
    v_lshrrev_b32 v16, 5, v0
    v_lshl_add_u32 v{V_OA}, v16, 4, v{V_OA}
    v_lshrrev_b32 v16, 4, v0
    v_lshl_add_u32 v{V_OB}, v16, 3, v{V_OB}
    """)

def phase2_ring(e, vq):
    NB = 16
    ACC, IN = (160, 180), 200
    V_W, V_R, V_OA, V_OB = 2, 3, 14, 15
    def hload(n): return f"buffer_load_dwordx4 {vr(V2_H + (n % NB)*4, 4)}, v{V2_HL + n // 12}, {srd(SRD_H)}, s{S_P + n % 12} offen sc1"
    for n in range(O.hn): vq.issue(hload(n), ("h", n))
    e(f"""
    s_lshl_b32 s{S_T0}, s{S_WAVE}, 14
    v_lshl_add_u32 v{V_W}, v0, {dict([(128, 4), (64, 3), (32, 2)])[O.wr]}, s{S_T0}
    s_add_u32 s{S_T0}, s{S_T0}, 16384
    s_and_b32 s{S_T0}, s{S_T0}, 0xffff
    v_lshl_add_u32 v{V_R}, v0, {dict([(128, 4), (64, 3), (32, 2)])[O.wr]}, s{S_T0}
    """)
    out_addr(e, V_OA, V_OB)
    for r in range(4):
        fill = {}
        if r >= 1:
            P = ACC[(r - 1) & 1]
            if r >= 2:
                fill[3] = ["s_waitcnt lgkmcnt(0)"]
                for i in range(20): fill[4 + i] = [f"v_add_f32 v{P+i}, v{P+i}, v{IN+i}"]
            w0 = O.rw0 if r >= 2 else 8
            nw = O.wr // 32
            reg = lambda a: vr(a, nw) if nw > 1 else f"v{a}"
            for i in range(20 // nw):
                fill.setdefault(w0 + O.wstep*i, []).append(f"ds_write_b{O.wr} v{V_W}, {reg(P + nw*i)} offset:{(r-1)*5120 + i*256*nw}")
            assert w0 + O.wstep * (20 // nw - 1) < O.rbar
            fill[O.rbar] = ["s_waitcnt lgkmcnt(0)", "s_barrier"]
            for i in range(20 // nw):
                fill.setdefault(min(59, O.rbar + 1 + i // (2 if nw == 1 else 1)), []).append(f"ds_read_b{O.wr} {reg(IN + nw*i)}, v{V_R} offset:{(r-1)*5120 + i*256*nw}")
        for s in range(12):
            n = 12 * r + s
            vq.wait({("h", n), ("w", s)})
            if (O.fine and s == 0) or n == 0: stamp(e)
            for t in range(5):
                acc = vr(ACC[r & 1] + 4*t, 4)
                e(f"v_mfma_f32_16x16x32_bf16 {acc}, {ar(20*s + 4*t, 4)}, {vr(V2_H + (n % NB)*4, 4)}, {acc if s else '0'}")
                if t == 0 and n + O.hn < 48: vq.issue(hload(n + O.hn), ("h", n + O.hn))
                e(fill.get(5*s + t, []))
    P = ACC[1]
    if O.t3:
        stamp(e)
        def fin(t):
            b = P + 4*t
            return [f"v_add_f32 v{b+i}, v{b+i}, v{IN+4*t+i}" for i in range(4)] + \
                   [f"v_cvt_pk_bf16_f32 v{144+2*t}, v{b}, v{b+1}", f"v_cvt_pk_bf16_f32 v{145+2*t}, v{b+2}, v{b+3}"]
        def st4(r, off):
            return [f"v_permlane16_swap_b32 v{r}, v{r+2}", f"v_permlane16_swap_b32 v{r+1}, v{r+3}",
                    f"buffer_store_dwordx4 {vr(r,4)}, v{V_OA}, {srd(SRD_O)}, s{S_OO} offen offset:{off} {O.ostore}"]
        e("s_waitcnt lgkmcnt(0)\ns_nop 2")
        e(fin(0) + fin(1) + fin(2)[:2] + st4(144, 0) + fin(2)[2:] + fin(3) + fin(4)[:2] + st4(148, 64) + fin(4)[2:])
        e(f"buffer_store_dwordx2 {vr(152,2)}, v{V_OB}, {srd(SRD_O)}, s{S_OO} offen offset:128 {O.ostore}")
        return
    stamp(e)
    e("s_waitcnt lgkmcnt(0)\ns_nop 2")
    for t in range(5):
        b = P + 4*t
        for h in range(2): e(f"v_pk_add_f32 {vr(b+2*h,2)}, {vr(b+2*h,2)}, {vr(IN+4*t+2*h,2)}")
        e(f"v_cvt_pk_bf16_f32 v{144+2*t}, v{b}, v{b+1}")
        e(f"v_cvt_pk_bf16_f32 v{145+2*t}, v{b+2}, v{b+3}")
        if t in (1, 3):
            r = 144 + 2 * (t - 1)
            e(f"s_nop 1\nv_permlane16_swap_b32 v{r}, v{r+2}\nv_permlane16_swap_b32 v{r+1}, v{r+3}")
            e(f"buffer_store_dwordx4 {vr(r,4)}, v{V_OA}, {srd(SRD_O)}, s{S_OO} offen offset:{32*(t-1)} {O.ostore}")
        if t == 4:
            e(f"buffer_store_dwordx2 {vr(152,2)}, v{V_OB}, {srd(SRD_O)}, s{S_OO} offen offset:128 {O.ostore}")

_jn = [0]
def jitter(e, bit, mul, per_wave=False):
    if not (O.jit >> bit) & 1: return
    _jn[0] += 1; n = _jn[0]
    e(f"""
    s_memrealtime s[88:89]
    s_waitcnt lgkmcnt(0)
    s_lshr_b32 s88, s88, 12
    s_add_u32 s88, s88, s2
    {f"s_add_u32 s88, s88, s{S_WAVE}" if per_wave else ""}
    s_mul_i32 s88, s88, {mul}
    s_bfe_u32 s88, s88, 0x50008
    L_jit{n}:
    s_cmp_eq_u32 s88, 0
    s_cbranch_scc1 L_jit{n}e
    s_sleep 8
    s_sub_u32 s88, s88, 1
    s_branch L_jit{n}
    L_jit{n}e:
    """)

def kernel(e):
    tail = []
    vq = VQ(e)
    e("s_cmp_ge_u32 s2, 256\ns_cbranch_scc1 L_done")
    stamp_init(e)
    jitter(e, 0, 40503)
    setup_x(e)
    if O.pro: stamp(e)
    ops = stage_ops(0)
    for op in ops[:4]: vq.issue(op.ins, op.tag)
    setup_w(e)
    for op in ops[4:]: emit(e, vq, op)
    if O.halft == 2:
        stamp(e)
        for n in (9, 6, 3, 0): e(f"s_waitcnt vmcnt({n})"); stamp(e)
    if O.halft == 1:
        vq.wait({("s0a",)}); e("s_barrier"); stamp(e)
        vq.wait({("s", 0)}); e("s_barrier"); stamp(e)
    if O.pro: stamp(e)
    e(f"""
    s_mov_b32 s{SRD_H+2}, {WS_BYTES}
    s_mov_b32 s{SRD_H+3}, 0x262144
    s_mov_b32 s{SRD_B+2}, 256
    s_mov_b32 s{SRD_B+3}, 0x262144
    s_lshl_b32 s{S_T0}, s{S_F if O.z240 else S_M}, 11
    s_add_u32 s{S_T0}, s{S_T0}, {CNT_OFF}
    s_lshl_b32 s{S_T1}, s{S_F if O.z240 else S_M}, 2
    {f"s_sub_u32 s{S_T2}, 15, s{S_M}" if O.z240 else f"s_mov_b32 s{S_T2}, s{S_F}"}
    s_or_b32 s{S_T2}, s{S_T2}, s{S_WAVE}
    s_cmp_eq_u32 s{S_T2}, 0
    s_cselect_b32 s{S_T0}, s{S_T0}, s{SRD_H+2}
    s_cselect_b32 s{S_T1}, s{S_T1}, s{SRD_B+2}
    v_lshrrev_b32 v2, 3, v0
    v_lshlrev_b32 v2, 25, v2
    v_and_b32 v3, 7, v0
    v_lshl_add_u32 v2, v3, 8, v2
    v_lshl_add_u32 v{V_FL}, v0, 8, s{S_T1}
    v_mov_b32 v3, 0
    v_mov_b32 v{V_ONE}, 1
    v_mov_b32 v{V_CHK}, 1
    s_waitcnt lgkmcnt(0)
    """)
    vq.issue(masked(f"buffer_store_dword v3, v2, {srd(SRD_H)}, s{S_T0} offen sc1", 0xff), "zero")
    if O.tlb & 1:
        e(f"""
        s_mov_b32 s{SRD_D+2}, {W_BYTES}
        s_mov_b32 s{SRD_D+3}, 0x262144
        v_min_u32 v2, 4, v0
        v_lshlrev_b32 v2, 21, v2
        v_add_u32 v2, {(2 << 20) - 128}, v2
        v_mov_b32 v4, 128
        """)
        vq.issue(masked(f"buffer_load_dword v27, v2, {srd(SRD_H)}, 0 offen", 0x1f), "tl")
        vq.issue(masked(f"buffer_load_dword v28, v4, {srd(SRD_D)}, 0 offen"), "tl")
        vq.issue(masked(f"buffer_load_dword v29, v4, {srd(SRD_B)}, 0 offen"), "tl")
    if O.warm:
        e(f"""
        s_mov_b64 exec, 0
        s_cmp_eq_u32 s{S_WAVE}, 1
        s_cbranch_scc1 L_warm0
        s_cmp_eq_u32 s{S_WAVE}, 2
        s_cbranch_scc1 L_warm1
        L_warm_ret:
        s_mov_b64 exec, -1
        """)
    rp_dma = [Op(f"buffer_load_dwordx4 v{V_RD}, {srd(SRD_D)}, 0 offen {'nt' if O.ntr else ''} lds", "rpl", [f"s_mov_b32 m0, s{S_MR}"]),
              Op(f"buffer_load_dwordx4 v{V_RD+1}, {srd(SRD_D)}, 0 offen offset:1024 {'nt' if O.ntr else ''} lds", "rpl")]
    rp_rest = None
    if O.rpa == -2:
        t = E(); setup_repack(t); L = [x.strip() for x in t.L]
        k = max(i for i, x in enumerate(L) if f"s{S_MR}," in x) + 1
        e(L[:k])
        for op in rp_dma: emit(e, vq, op)
        e(L[k:])
        rp_rest = True
    e(adv_src(1))
    setup_reads(e)
    lateq = {}
    if O.late and O.rpa >= 1:
        t = E(); setup_repack(t); L = [x.strip() for x in t.L]
        k = max(i for i, x in enumerate(L) if f"s{S_MR}," in x) + 1
        lateq[0], lateq[1] = L[:k], L[k:]
        t = E(); setup_p2(t); L = [x.strip() for x in t.L]
        k = len(L) // 2
        while L[k].startswith('s_cselect') or L[k - 1].startswith('s_cmp'): k += 1
        lateq[5], lateq[6] = L[:k], L[k:]
    else:
        if not rp_rest: setup_repack(e)
        setup_p2(e)
    if O.pro: stamp(e)
    sites = O.sites.split("/") if O.sites else []
    if sites:
        e(f"s_bfe_u32 s{S_T0}, s2, 0x20003\ns_mul_i32 s{S_T0}, s{S_T0}, {len(sites)}\ns_lshr_b32 s{S_T0}, s{S_T0}, 2\ns_add_u32 s{S_T1}, s{S_MR}, 8192")
        for k in range(len(sites)):
            e(f"s_cmp_eq_u32 s{S_T0}, {k}\ns_cselect_b32 s{S_SM+k}, s{S_MR}, s{S_T1}\ns_cselect_b32 s{S_SO+k}, 0, s{SRD_D+2}")
    def site_ops(k):
        return [Op(f"buffer_load_dwordx4 v{V_RD}, {srd(SRD_D)}, s{S_SO+k} offen lds", "rpl", [f"s_mov_b32 m0, s{S_SM+k}"]),
                Op(f"buffer_load_dwordx4 v{V_RD+1}, {srd(SRD_D)}, s{S_SO+k} offen offset:1024 lds", "rpl")]
    if O.touch:
        e(f"""
        s_lshr_b32 s{S_T0}, s{S_F}, 2
        s_cmp_eq_u32 s{S_F}, 10
        s_addc_u32 s{S_T0}, s{S_T0}, 0
        s_lshl4_add_u32 s{S_T0}, s{S_T0}, s{S_M}
        s_lshl2_add_u32 s{S_T0}, s{S_T0}, s{S_WAVE}
        s_mul_i32 s{S_T0}, s{S_T0}, {60*128}
        s_bitcmp1_b32 0x511, s{S_F}
        s_cselect_b32 s{S_TO}, s{S_T0}, s{SRD_D+2}
        v_min_u32 v27, 59, v0
        v_lshlrev_b32 v27, 7, v27
        """)
    touch_op = Op(f"buffer_load_dword v28, v27, {srd(SRD_D)}, s{S_TO} offen", "tch")
    if O.pal: e("s_branch L_pg1\n.p2align 12\nL_pg1:")
    for op in stage_ops(1): emit(e, vq, op)
    e(adv_src(2))
    if O.touch == 1: emit(e, vq, touch_op)
    if "P" in sites:
        for op in site_ops(sites.index("P")): emit(e, vq, op)
    if O.rpa == -1:
        for op in rp_dma: emit(e, vq, op)
    stamp(e)
    vq.wait({("s", 0), "zero"} | ({"rpl"} if O.rpa == -2 and O.rlag == 2 else set()))
    e("s_barrier")
    if O.pro: stamp(e)
    if O.oob & 1: e(f"s_mov_b32 s{SRD_X+2}, 0\ns_mov_b32 s{SRD_G+2}, 0\ns_mov_b32 s{SRD_U+2}, 0")
    if O.oob & 2: e(f"s_mov_b32 s{S_WB}, s{SRD_H+2}")
    vq.issue(masked(f"buffer_store_dword v{V_ONE}, v{V_FL}, {srd(SRD_B)}, 0 offen sc1"), "flag")
    if O.touch == 2: emit(e, vq, touch_op)
    rp_rd = [f"ds_read_b64_tr_b16 {vr(V_RT + 4*u + 2*h, 2)}, v{V_RR0+u} offset:{1024*h}" for u in range(2) for h in range(2)]
    rp_st = [Op(f"buffer_store_dwordx4 {vr(V_RT + 4*u, 4)}, v{V_L16}, {srd(SRD_H)}, s{S_RP0+u} offen sc1", "rps") for u in range(2)]
    wd = [op for i in range(12) for op in wd_ops(i)]
    def take(n):
        out = wd[:n]; del wd[:n]; return out
    a = O.rpa
    casc = [int(x) for x in O.casc.split("/")] if O.casc else None
    allops = [op for k in range(2, 10) for op in stage_ops(k)]
    for st in range(9):
        src = adv_src(st + 3)
        fill = {44: src[:2], 45: src[2:4], 46: src[4:]} if st < 7 else {}
        need = {("s", st + 1)}
        ops = stage_ops(st + 2) if st < 8 else take(O.b7)
        cgaps = None
        if casc and st < 8:
            ops, allops = allops[:casc[st]], allops[casc[st]:]
            g0 = O.cg0 if st == a else 2
            cgaps = DMA_GAPS if len(ops) == 10 and g0 == 2 else [g0 + ((43 - g0) * k) // (len(ops) - 1) for k in range(len(ops))]
            fill = {}
            for k, op in enumerate(ops):
                nxt = ops[k + 1] if k + 1 < len(ops) else (allops[0] if allops else None)
                if nxt is not None and nxt.tag != op.tag:
                    src = adv_src(nxt.tag[1])
                    fill[cgaps[k] + 1], fill[cgaps[k] + 2] = src[:3], src[3:]
        if O.nodma and st < 8: ops = []
        def cond(g, L, name):
            t = E(); q = VQ(t)
            t(L) if not any(isinstance(x, Op) for x in L) else [emit(t, q, x) for x in L]
            return [f"s_cmp_eq_u32 s{S_GRP}, {g}", f"s_cbranch_scc0 L_{name}{st}"] + [x.strip() for x in t.L] + [f"L_{name}{st}:"]
        chk = f"buffer_load_dword v{V_CHK}, v{V_DBG}, {srd(SRD_B)}, 0 offen sc1"
        sig = Op(masked(f"buffer_atomic_add v{V_ONE}, v{V_SG}, {srd(SRD_H)}, 0 offen sc1"), "sig")
        if O.norp: pass
        elif O.rpg == 1:
            if O.rpe and st == a - 1:
                fill.setdefault(O.rpe - 1, []).append(rp_dma[0].pre[0])
                fill.setdefault(O.rpe, []).append(Op(rp_dma[0].ins, "rpl"))
                fill.setdefault(O.rpe + 1, []).append(rp_dma[1])
            for k, sname in enumerate(sites):
                if sname == "T" and st == a:
                    for op in site_ops(k): emit(e, vq, op)
                if sname.isdigit() and st == a - 1:
                    g = int(sname)
                    nxt = min(x for x in DMA_GAPS + [99] if x > g)
                    L = site_ops(k)
                    if nxt != 99 and not ops[DMA_GAPS.index(nxt)].pre:
                        j = max(i for i in range(DMA_GAPS.index(nxt)) if ops[i].pre)
                        L.append(ops[j].pre[0])
                    fill.setdefault(g, []).extend(L)
            if st == a and not O.rpe and not sites:
                for op in rp_dma: emit(e, vq, op)
            if st == max(a + O.rlag - 1, 0): need.add("rpl")
            if a + O.rlag < (0 if a == -2 else 1): raise SystemExit("rlag too small")
            if st == a + O.rlag:
                e(rp_rd)
                fill[O.stg] = fill.get(O.stg, []) + [rp_st[0]]; fill[O.stg + 1] = [rp_st[1]]
                if O.t6 and st > 0: fill[0] = [Op(chk, "chk")]
            if st == a + O.rlag + 1:
                if not O.t6 or st == 1: fill[0] = [Op(chk, "chk")]
                need |= {"rps", "chk"}
            if st == a + O.rlag + 2:
                spin(e, tail, "zchk", f"v_cmp_ne_u32 vcc, 1, v{V_CHK}", chk)
                fill[0] = [sig]
        else:
            for g in range(2):
                if st == a + g: e(cond(g, rp_dma, "ca"))
                if st == a + g + 1:
                    e(cond(g, rp_rd, "cb"))
                    fill[O.stg] = cond(g, rp_st, "cc")
                if st == a + g + 3: fill[0] = cond(g, [sig], "cd")
            if st == a + 2:
                if O.chk0: fill[0] = [f"s_cmp_eq_u32 s{S_WAVE}, 0", "s_cbranch_scc0 L_nochk", chk, "L_nochk:"]
                else: fill[0] = [Op(chk, "chk")]; need.add("chk")
            if st == a + 3: spin(e, tail, "zchk", f"v_cmp_ne_u32 vcc, 1, v{V_CHK}", chk)
        if st == 7:
            fill[O.pg] = [Op(f"buffer_load_dword v{V_CHK}, v{V_CHA}, {srd(SRD_H)}, 0 offen sc1", "rpp")]
            if not O.t5: need.add("rpp")
        gaps = cgaps or DMA_GAPS
        if st == 8 and not O.norp:
            t = E() if O.t5 else e
            if O.t5: t(f"s_waitcnt vmcnt({vq.count({'rpp'})})")
            spin(t, tail, "rchk", f"v_cmp_ne_u32 vcc, 12, v{V_CHK}", f"buffer_load_dword v{V_CHK}, v{V_CHA}, {srd(SRD_H)}, 0 offen sc1")
            if not O.t5: gaps = [1 + (46 * k) // len(ops) for k in range(len(ops))]
            if O.t5:
                fill[8] = [x.strip() for x in t.L]
                gaps = [10 + (36 * k) // len(ops) for k in range(len(ops))]
        if st in lateq: place(fill, lateq[st], O.nrest if st == 0 else 1)
        body(e, vq, st, ops, fill, need, gaps)
        if O.fine or st == 8: stamp(e)
        if st in (1, 3, 6): jitter(e, 1, 30011 + 2 * st, True)
    NR = O.nrest
    s1 = [mf1(1, t, j) for t in range(6) for j in jord(t)]
    units = [(a, jp) for a in range(3) for jp in (0, 2)]
    mf = s1[24-NR:]
    for a, jp in units:
        mf += [mf1(ks, 2*a + gu, jp + d, 2 * ks) for ks in range(2) for gu in range(2) for d in range(2)]
    rd = [rdB(9, 0, 0)] + rdA(9, 0, 0) + [rdB(9, 0, 1)] + rdA(9, 0, 1) + [rdB(9, 1, 0, 2)] + rdA(9, 1, 0) + [rdB(9, 1, 1, 2)] + rdA(9, 1, 1)
    rd += [rdB(9, 0, 2), rdB(9, 0, 3), rdB(9, 1, 2, 2), rdB(9, 1, 3, 2)]
    for t in (2, 4): rd += rdA(9, 0, t) + rdA(9, 0, t + 1) + rdA(9, 1, t) + rdA(9, 1, t + 1)
    rd_at, k = {}, 0
    for p in range(-1, 40):
        n = 2 if p < 6 else 1
        rd_at[p], k = rd[k:k+n], min(k + n, 32)
    needs = {NR: 5, NR + 4: 11, NR + 8: 15, NR + 16: 23, NR + 32: 31}
    def epi(a, jp, pk=False):
        L = []
        for d in range(2):
            g = acc1(2*a, jp + d)
            L += [f"v_max_f32 v{g+r}, 0, v{g+r}" for r in range(4)]
        for d in range(2):
            g, u = acc1(2*a, jp + d), acc1(2*a + 1, jp + d)
            if pk: L += [f"v_pk_mul_f32 {vr(g+2*h,2)}, {vr(g+2*h,2)}, {vr(u+2*h,2)}" for h in range(2)]
            else: L += [f"v_mul_f32 v{g+r}, v{g+r}, v{u+r}" for r in range(4)]
        u = acc1(2*a + 1, jp)
        for d in range(2):
            g = acc1(2*a, jp + d)
            L += [f"v_cvt_pk_bf16_f32 v{u+2*d+h}, v{g+2*h}, v{g+2*h+1}" for h in range(2)]
        L += ["s_nop 1", f"v_permlane16_swap_b32 v{u}, v{u+2}", f"v_permlane16_swap_b32 v{u+1}, v{u+3}"]
        return L + [Op(f"buffer_store_dwordx4 {vr(u,4)}, v{V_HOFF}, {srd(SRD_H)}, s{S_HST+a} offen offset:{jp*1024} {O.hstore}", "st")]
    if O.wg9: O.b8 = len(O.wg9.split('/'))
    wops = take(O.b8)
    wgaps = [int(x) for x in O.wg9.split('/')] if O.wg9 else [int(O.w0 + k * O.wd) for k in range(len(wops))]
    issued, pend = len(rd_at[-1]), []
    e(rd_at[-1])
    for p in range(len(mf)):
        if p in needs: e(f"s_waitcnt lgkmcnt({min(15, issued - 1 - needs[p])})")
        e(mf[p])
        if p in rd_at: e(rd_at[p]); issued += len(rd_at[p])
        if p in wgaps: emit(e, vq, wops.pop(0))
        q = p - NR - 8
        if q >= 0 and q % 8 == O.elag:
            L = epi(*units[q // 8])
            if O.t2:
                c = L[-8:-4]
                L = L[:-8] + [c[0], c[2], c[1], c[3], "GAP", L[-3], L[-2], L[-1]]
            pend += L
        k = 0
        while pend and k < O.en:
            x = pend.pop(0)
            if x == "GAP":
                if k: break
                continue
            emit(e, vq, x); k += 1
    for x in pend: emit(e, vq, "s_nop 0" if x == "GAP" else x)
    stamp(e)
    e("s_nop 3")
    for x in epi(*units[5], pk=True): emit(e, vq, x)
    stamp(e)
    for x in take(O.pre): emit(e, vq, x)
    stamp(e)
    jitter(e, 2, 52361, True)
    vq.wait({"st"})
    e("s_barrier")
    jitter(e, 2, 12347, True)
    stamp(e)
    vq.issue(masked(f"buffer_atomic_add v{V_ONE}, v{V_SH}, {srd(SRD_H)}, 0 offen sc1"), "sigh")
    e("v_mov_b32 v2, 0")
    poll = f"buffer_load_dword v3, v2, {srd(SRD_H)}, s{S_CP} offen sc1"
    for x in take(max(0, len(wd) - O.pollat)): emit(e, vq, x)
    vq.issue(poll, "poll")
    for x in take(len(wd)): emit(e, vq, x)
    stamp(e)
    if O.pal: e("s_branch L_pg2\n.p2align 12\nL_pg2:")
    vq.wait({"poll"})
    spin(e, tail, "poll", "v_cmp_ne_u32 vcc, 4, v3", poll)
    stamp(e)
    if O.ring:
        phase2_ring(e, vq)
        stamp(e)
        stamp_flush(e, 16 << 20)
        e("L_done:\ns_endpgm")
        e(tail)
        e("L_end:")
        return
    for i in range(O.hd):
        for x in h_loads(i): vq.issue(x, ("h", i))
    V_RW0, V_RR, V_OA, V_OB = 2, 3, 14, 15
    e(f"v_add_u32 v{V_RW0}, s{S_LW}, v{V_L16}\nv_add_u32 v1, {2*SLOT}, v{V_RW0}")
    for j in range(3):
        e(f"""
        s_sub_u32 s{S_T0}, s{S_WAVE}, {j+1}
        s_and_b32 s{S_T0}, s{S_T0}, 3
        s_mul_i32 s{S_T0}, s{S_T0}, 10240
        s_add_u32 s{S_T0}, s{S_T0}, {[0, 5120, 2*SLOT][j]}
        v_add_u32 v{V_RR+j}, s{S_T0}, v{V_L16}
        """)
    e(f"""
    v_and_b32 v{V_OB}, 15, v0
    v_mul_u32_u24 v{V_OB}, 1280, v{V_OB}
    v_bfe_u32 v{V_OA}, v0, 4, 1
    v_lshl_add_u32 v{V_OA}, v{V_OA}, 5, v{V_OB}
    v_lshrrev_b32 v16, 5, v0
    v_lshl_add_u32 v{V_OA}, v16, 4, v{V_OA}
    v_lshrrev_b32 v16, 4, v0
    v_lshl_add_u32 v{V_OB}, v16, 3, v{V_OB}
    """)
    def red_write(j, t):
        va, off = (V_RW0, j * 5120) if j < 2 else (1, 0)
        return f"ds_write_b128 v{va}, {vr(V2_ACC + (j*5+t)*4, 4)} offset:{off + t*1024}"
    for s in range(12):
        vq.wait({("h", s), ("w", s)})
        if O.fine or s == 0: stamp(e)
        hl = h_loads(s + O.hd) if s + O.hd < 12 else []
        order = [(t, j) for t in range(5) for j in range(4)] if s < 11 else [(t, j) for j in range(4) for t in range(5)]
        for k, (t, j) in enumerate(order):
            acc = vr(V2_ACC + (j*5 + t)*4, 4)
            e(f"v_mfma_f32_16x16x32_bf16 {acc}, {ar(20*s + 4*t, 4)}, {vr(V2_H + (s%6)*16 + j*4, 4)}, {acc if s else '0'}")
            if k % 5 == 0 and k // 5 < len(hl): vq.issue(hl[k // 5], ("h", s + O.hd))
            if s == 11 and k >= 8: e(red_write((k - 8) // 5, (k - 8) % 5))
    for k in range(20, 23): e(red_write((k - 8) // 5, (k - 8) % 5))
    stamp(e)
    e("s_waitcnt lgkmcnt(0)\ns_barrier")
    stamp(e)
    for t in range(5):
        for j in range(3):
            e(f"ds_read_b128 {vr(64 + (t*3+j)*4, 4)}, v{V_RR+j} offset:{t*1024}")
    OWN = V2_ACC + 60
    for t in range(5):
        b = 64 + t * 12
        e(f"s_waitcnt lgkmcnt({12 - 3*t})")
        for h in range(2):
            e(f"v_pk_add_f32 {vr(b+2*h,2)}, {vr(b+2*h,2)}, {vr(b+4+2*h,2)}")
            e(f"v_pk_add_f32 {vr(OWN+t*4+2*h,2)}, {vr(OWN+t*4+2*h,2)}, {vr(b+8+2*h,2)}")
        for h in range(2):
            e(f"v_pk_add_f32 {vr(b+2*h,2)}, {vr(b+2*h,2)}, {vr(OWN+t*4+2*h,2)}")
        e(f"v_cvt_pk_bf16_f32 v{144+2*t}, v{b}, v{b+1}")
        e(f"v_cvt_pk_bf16_f32 v{145+2*t}, v{b+2}, v{b+3}")
        if t in (1, 3):
            r = 144 + 2 * (t - 1)
            e(f"s_nop 1\nv_permlane16_swap_b32 v{r}, v{r+2}\nv_permlane16_swap_b32 v{r+1}, v{r+3}")
            e(f"buffer_store_dwordx4 {vr(r,4)}, v{V_OA}, {srd(SRD_O)}, s{S_OO} offen offset:{32*(t-1)} {O.ostore}")
        if t == 4:
            e(f"buffer_store_dwordx2 {vr(152,2)}, v{V_OB}, {srd(SRD_O)}, s{S_OO} offen offset:128 {O.ostore}")
    stamp(e)
    stamp_flush(e, 16 << 20)
    e("L_done:\ns_endpgm")
    e(tail)
    e("L_end:")

HEADER = """
"""

def gen():
    e = E()
    e.L += HEADER.strip().split("\n") + [
            f"; @launch grid=(256,1,1) block=(256,1,1) lds={LDS_BYTES}",
            '.amdgcn_target "amdgcn-amd-amdhsa--gfx950"', ".text", f".globl {KNAME}"] + ([".p2align 12"] if O.pal else []) + [".p2align 8",
            f".type {KNAME},@function", f"{KNAME}:"]
    kernel(e)
    e.L += ['.section .rodata,"a"', ".p2align 6", f".amdhsa_kernel {KNAME}",
            "  .amdhsa_next_free_vgpr 496", "  .amdhsa_next_free_sgpr 100", "  .amdhsa_accum_offset 256",
            "  .amdhsa_group_segment_fixed_size 0", "  .amdhsa_float_denorm_mode_32 3", "  .amdhsa_kernarg_size 56", "  .amdhsa_user_sgpr_count 2",
            "  .amdhsa_user_sgpr_kernarg_segment_ptr 1", "  .amdhsa_system_sgpr_workgroup_id_x 1", ".end_amdhsa_kernel"]
    return add_warm_stubs(e.text()) if O.warm else e.text()

def add_warm_stubs(txt):
    import subprocess, re, tempfile, os
    L = txt.split("\n")
    for k in range(2):
        T = list(L)
        for j in range(k, 2): T.insert(T.index("L_done:"), f"L_warm{j}:")
        with tempfile.TemporaryDirectory() as d:
            open(d + "/a.s", "w").write("\n".join(T))
            subprocess.run(["clang", "-x", "assembler", "-target", "amdgcn-amd-amdhsa", "-mcpu=gfx950", "-c", "-g", d + "/a.s", "-o", d + "/a.o"], check=True)
            dis = subprocess.run(["llvm-objdump", "-d", "-l", "--mcpu=gfx950", d + "/a.o"], capture_output=True, text=True).stdout
        line, addr = None, {}
        for l in dis.split("\n"):
            m = re.match(r"; .*a\.s:(\d+)", l)
            if m: line = int(m.group(1)); continue
            m = re.search(r"// ([0-9A-F]{12}):", l)
            if m and line is not None and line not in addr: addr[line] = int(m.group(1), 16)
        p1 = T.index("L_pg1:") + 1 if "L_pg1:" in T else None
        base = addr[p1 + 1] if p1 else 0x1000 - 0x300
        target = base + 0x1000 * (k + 1)
        ln = min(n for n, a in addr.items() if a >= target and n > (p1 or 0))
        i = ln - 1
        while "v_mfma" not in L[i - 1]: i += 1
        L[i:i] = [f"L_warm{k}:", "    s_cbranch_execz L_warm_ret"]
    return "\n".join(L)

if __name__ == "__main__":
    out = sys.argv[1]
    for a in sys.argv[2:]:
        k, _, v = a.partition("=")
        cur = getattr(O, k)
        setattr(O, k, (v == "1") if isinstance(cur, bool) else type(cur)(v))
    open(out, "w").write(gen())
```

```python
import sys, re

S, D, F = 2048, 640, 1536
X_BYTES = S * D * 2
W_BYTES = D * F * 2
KNAME = "standalone__glu_gated_reglu__prompt_kernel"
CNT_OFF = (8 << 20) + 1966080
WP_OFF = 8 << 20
WS_BYTES = 32 << 20

class Opt:
    stamps = False
    smin = False
    m162 = True
    nt0 = 0
    ntr = False
    fine = False
    pro = False
    cyc = False
    G = 10
    hstore = "sc1"
    ostore = ""
    b7 = 10
    b8 = 6
    pre = 12
    pollat = 10
    cpre = True
    cpn = 32
    elag = 2
    hd = 3
    w0 = 1.0
    wd = 2.0
    en = 3
    rpa = 1
    nrest = 10
    norp = False
    lock = 0
    rpe = 0
    wr = 64
    wstep = 2
    t5 = True
    t6 = True
    t2 = True
    sites = ""
    tlb = 0
    pal = False
    warm = False
    slowf = 0
    slowm = 0x3084
    emu = False
    oob = 0
    pret = False
    halft = 0
    snake = True
    wg9 = ""
    casc = ""
    cg0 = 2
    jit = 0
    pair = 1
    dtab = ""
    z240 = False
    m84 = False
    rpmask = 0xffff
    map2 = 84
    touch = 0
    btab = ""
    lch = "2/4/4/4"
    t3 = True
    late = False
    ring = True
    hn = 10
    rw0 = 24
    rbar = 46
    rpg = 1
    chk0 = True
    ex1 = True
    rlag = 1
    stg = 46
    pg = 0
    nodma = False
    nobar = False
O = Opt()

class E:
    def __init__(self): self.L = []
    def __call__(self, s):
        if isinstance(s, (list, tuple)):
            for x in s: self(x)
            return
        for ln in s.split("\n"):
            ln = ln.strip()
            if ln: self.L.append(ln if ln.endswith(":") else "    " + ln)
    def text(self): return "\n".join(self.L) + "\n"

def vr(a, n): return f"v[{a}:{a+n-1}]"
def ar(a, n): return f"a[{a}:{a+n-1}]"
def lines(s): return [x.strip() for x in s.strip().split("\n") if x.strip()]

SRD_X, SRD_G, SRD_U, SRD_D, SRD_O, SRD_H, SRD_B = 4, 8, 12, 16, 20, 24, 28
def srd(n): return f"s[{n}:{n+3}]"
S_WAVE = 32
S_M, S_F, S_R, S_C = 33, 34, 35, 36
S_SX, S_SW = 37, 38
S_MX, S_MG = 39, 40
S_GRP = 42
S_ROT = 43
S_SM, S_SO = 84, 94
S_SW2 = 44
S_TO = 45
S_MR = 41
S_T0, S_T1, S_T2, S_T3 = 47, 48, 49, 46
S_HST = 50
S_LW = 55
S_OO = 56
S_CP = 58
S_DS = 59
S_RP0, S_RP1 = 61, 62
S_P = 64
S_WB = 78
S_PC = 82
S_ST, S_STI = 90, 92
S_SPIN = 93

SLOT = 40960
LDS_BYTES = 163840
RPB = 3 * SLOT

V_L16, V_L16B = 6, 7
V_DBG, V_ONE = 8, 13
V_RD, V_RR0, V_RT = 9, 11, 16
V_FL, V_SG, V_SH = 24, 25, 26
V_ST = 31
V_DX, V_DG = 40, 44
V_RX, V_RW = (32, 48), (34, 50)
V_HOFF, V_CHK, V_CHA = 57, 58, 59
V2_HL = 60
V_A, V_B, V_ACC1 = 64, 96, 160
V2_H, V2_ACC = 64, 160

def clk(): return "s_memtime" if O.cyc else "s_memrealtime"
def stamp_init(e):
    if not O.stamps: return
    e(f"{clk()} s[{S_ST}:{S_ST+1}]\ns_mov_b32 s{S_STI}, 1\ns_waitcnt lgkmcnt(0)\nv_mov_b32 v{V_ST}, s{S_ST}")
def stamp(e, force=False):
    if not O.stamps or (O.smin and not force): return
    e(f"""{clk()} s[{S_ST}:{S_ST+1}]
    v_cmp_eq_u32 vcc, s{S_STI}, v0
    s_add_u32 s{S_STI}, s{S_STI}, 1
    s_waitcnt lgkmcnt(0)
    v_mov_b32 v{V_ST-1}, s{S_ST}
    v_cndmask_b32 v{V_ST}, v{V_ST}, v{V_ST-1}, vcc""")
def stamp_flush(e, base):
    if not O.stamps: return
    e("s_waitcnt vmcnt(0)")
    stamp(e, True)
    e(f"""s_lshl_b32 s{S_ST}, s2, 2
    s_add_u32 s{S_ST}, s{S_ST}, s{S_WAVE}
    s_lshl_b32 s{S_ST}, s{S_ST}, 8
    s_add_u32 s{S_ST}, s{S_ST}, {base}
    v_lshlrev_b32 v{V_ST-1}, 2, v0
    buffer_store_dword v{V_ST}, v{V_ST-1}, {srd(SRD_H)}, s{S_ST} offen""")

class VQ:
    def __init__(self, e): self.e, self.q = e, []
    def issue(self, op, tag): self.e(op); self.q.append(tag)
    def count(self, tags):
        idx = [i for i, t in enumerate(self.q) if t in tags]
        assert all(t in self.q for t in tags) or O.nodma, tags
        n = len(self.q) - 1 - max(idx, default=-1)
        assert n < 64
        return n
    def wait(self, tags, extra=""): self.e(f"s_waitcnt vmcnt({self.count(tags)}) {extra}".strip())

class Op:
    def __init__(self, ins, tag, pre=()): self.ins, self.tag, self.pre = ins, tag, list(pre)
def masked(ins, mask=1):
    return f"s_mov_b64 exec, {mask}\n{ins}\ns_mov_b64 exec, -1" if O.ex1 else ins
def emit(e, vq, x):
    if isinstance(x, Op):
        e(x.pre)
        if x.pre and " m0," in x.pre[-1]: e("s_nop 0")
        vq.issue(x.ins, x.tag)
    else: e(x)

def nib(L): return sum(v << (4 * i) for i, v in enumerate(L))
def tile1():
    if O.m84:
        tab = [[2, 0, 1, 3], [7, 4, 5, 6], [8, 9, 10, 11], [12, 13, 14, 15]]
        lo = nib([tab[g][k] for k in range(2) for g in range(4)]); hi = nib([tab[g][k] for k in range(2, 4) for g in range(4)])
        return f"""s_and_b32 s{S_T0}, s2, 3
    s_bfe_u32 s{S_T1}, s2, 0x10003
    s_lshl2_add_u32 s{S_T2}, s{S_T1}, s{S_T0}
    s_lshl_b32 s{S_T2}, s{S_T2}, 2
    s_bitcmp1_b32 s2, 4
    s_mov_b32 s{S_F}, {lo:#x}
    s_cselect_b32 s{S_F}, {hi:#x}, s{S_F}
    s_lshr_b32 s{S_F}, s{S_F}, s{S_T2}
    s_and_b32 s{S_F}, s{S_F}, 15
    s_mul_i32 s{S_T0}, s{S_T0}, 3
    s_bfe_u32 s{S_T1}, s2, 0x20003
    s_add_u32 s{S_T0}, s{S_T0}, s{S_T1}
    s_lshr_b32 s{S_T2}, s2, 5
    s_bfe_u32 s{S_T1}, s2, 0x10002
    s_lshl3_add_u32 s{S_M}, s{S_T1}, s{S_T2}
    s_mul_i32 s{S_T2}, s{S_T2}, 5
    s_lshr_b32 s{S_T2}, s{S_T2}, 2
    s_add_u32 s{S_T1}, s{S_T1}, s{S_T2}
    s_sub_u32 s{S_T1}, s{S_T1}, s{S_M}"""
    if O.pair:
        d = [int(c) for c in O.dtab] if O.dtab else [5, O.pair, 6, O.pair, 5, 5, O.pair, O.pair]
        return f"""s_lshr_b32 s{S_M}, s2, 4
    s_and_b32 s{S_T0}, s2, 7
    s_lshl_b32 s{S_T2}, s{S_T0}, 2
    s_bitcmp1_b32 s2, 3
    s_mov_b32 s{S_F}, {nib([0, 2, 4, 7, 8, 10, 12, 13]):#x}
    s_cselect_b32 s{S_F}, {nib([1, 3, 5, 6, 9, 11, 14, 15]):#x}, s{S_F}
    s_cselect_b32 s{S_T1}, {nib(d):#x}, 0
    s_lshr_b32 s{S_F}, s{S_F}, s{S_T2}
    s_and_b32 s{S_F}, s{S_F}, 15
    s_lshr_b32 s{S_T1}, s{S_T1}, s{S_T2}
    s_and_b32 s{S_T1}, s{S_T1}, 15""" + (f"""
    s_lshr_b32 s{S_T0}, {nib([int(c) for c in O.btab]):#x}, s{S_T2}
    s_and_b32 s{S_T0}, s{S_T0}, 15""" if O.btab else "")
    if O.m162:
        return f"""s_lshr_b32 s{S_M}, s2, 4
    s_and_b32 s{S_T0}, s2, 7
    s_bfe_u32 s{S_T1}, s2, 0x10003
    s_lshl1_add_u32 s{S_F}, s{S_T0}, s{S_T1}"""
    return f"""s_and_b32 s{S_T0}, s2, 4
    s_lshl_b32 s{S_T0}, s{S_T0}, 1
    s_lshr_b32 s{S_T1}, s2, 5
    s_add_u32 s{S_M}, s{S_T0}, s{S_T1}
    s_and_b32 s{S_T0}, s2, 3
    s_bfe_u32 s{S_T1}, s2, 0x20003
    s_lshl2_add_u32 s{S_F}, s{S_T0}, s{S_T1}"""

def slow_m():
    if not O.slowf: return f"s_add_u32 s{S_T0}, s{S_M}, s{S_T0}"
    pre = f"s_and_b32 s{S_T2}, s{S_M}, 1\ns_mul_i32 s{S_T2}, s{S_T2}, 5\n" if O.slowf == 2 else f"s_mov_b32 s{S_T2}, 0\n"
    return pre + f"s_bitcmp1_b32 {O.slowm}, s{S_F}\ns_cselect_b32 s{S_T2}, s{S_T2}, s{S_M}\ns_add_u32 s{S_T0}, s{S_T2}, s{S_T0}"

def setup_x(e):
    e(f"""
    s_load_dwordx2 s[{SRD_X}:{SRD_X+1}], s[0:1], 0
    s_load_dwordx2 s[{SRD_G}:{SRD_G+1}], s[0:1], 8
    s_load_dwordx2 s[{SRD_U}:{SRD_U+1}], s[0:1], 16
    """)
    if O.cpre:
        e(f"""
        s_getpc_b64 s[{S_PC}:{S_PC+1}]
        L_pc:
        s_bfe_u32 s{S_T0}, s2, 0x20003
        s_mul_i32 s{S_T0}, s{S_T0}, {O.cpn}
        v_add_lshl_u32 v2, v0, s{S_T0}, 7
        v_min_u32 v2, L_end - L_pc - 4, v2
        v_mov_b32 v3, 0
        v_lshl_add_u64 v[2:3], v[2:3], 0, s[{S_PC}:{S_PC+1}]
        v_cmp_gt_u32 vcc, {O.cpn}, v0
        s_and_saveexec_b64 s[{S_PC+4}:{S_PC+5}], vcc
        s_cbranch_execz L_nocp
        global_load_dword v5, v[2:3], off
        L_nocp:
        s_mov_b64 exec, -1
        """)
    if O.lock: O.G = 10 - O.lock
    mg = (65536 + O.G - 1) // O.G
    e(f"""
    v_lshrrev_b32 v1, 6, v0
    v_and_b32 v0, 63, v0
    v_readfirstlane_b32 s{S_WAVE}, v1
    {tile1()}
    {f"s_mul_i32 s{S_T1}, s{S_T1}, {1 if O.pair or O.m84 else O.G // 2}{chr(10)}{slow_m()}{chr(10)}s_add_u32 s{S_T0}, s{S_T0}, s{S_T1}" if O.m162 and (O.G == 10 or O.lock) else f"s_add_u32 s{S_T0}, s{S_M}, s{S_F}"}
    s_mul_i32 s{S_T1}, s{S_T0}, {mg}
    s_lshr_b32 s{S_T1}, s{S_T1}, 16
    s_mul_i32 s{S_T1}, s{S_T1}, {O.G}
    s_sub_u32 s{S_T0}, s{S_T0}, s{S_T1}
    """)
    if O.lock: e(f"s_lshl_b32 s{S_ROT}, s{S_T0}, 7\ns_movk_i32 s{S_SX}, {128 * (10 - O.lock)}")
    elif 10 % O.G == 0: e(f"s_mul_i32 s{S_SX}, s{S_T0}, {1280 // O.G}")
    else: e(f"s_mul_i32 s{S_T0}, s{S_T0}, {10 * mg}\ns_lshr_b32 s{S_SX}, s{S_T0}, 16\ns_lshl_b32 s{S_SX}, s{S_SX}, 7")
    e(f"""
    v_lshrrev_b32 v2, 3, v0
    v_mul_u32_u24 v3, 1280, v2
    v_lshrrev_b32 v4, 4, v0
    v_and_b32 v1, 7, v0
    v_xor_b32 v4, v4, v1
    v_lshl_add_u32 v{V_DX}, v4, 4, v3
    v_xor_b32 v{V_DX+1}, 64, v{V_DX}
    v_add_u32 v{V_DX+1}, {10240-1024}, v{V_DX+1}
    v_add_u32 v{V_DX+2}, {2*(10240-1024)}, v{V_DX}
    v_add_u32 v{V_DX+3}, {2*(10240-1024)}, v{V_DX+1}
    s_lshl2_add_u32 s{S_T0}, s{S_M}, s{S_WAVE}
    s_mov_b32 s{SRD_X+2}, 40960
    s_mul_i32 s{S_T0}, s{S_T0}, s{SRD_X+2}
    s_mov_b32 s{SRD_X+3}, 0x262144
    s_lshl_b32 s{S_MX}, s{S_WAVE}, 12
    s_mov_b32 m0, s{S_MX}
    s_waitcnt lgkmcnt(0)
    """)
    if O.pret:
        e(f"""
        s_mov_b32 s{SRD_G+2}, 4
        s_mov_b32 s{SRD_G+3}, 0x262144
        s_mov_b32 s{SRD_U+2}, 4
        s_mov_b32 s{SRD_U+3}, 0x262144
        s_mov_b64 exec, 1
        buffer_load_dword v28, off, {srd(SRD_G)}, 0
        buffer_load_dword v29, off, {srd(SRD_U)}, 0
        s_mov_b64 exec, -1
        """)
    e(f"""
    s_add_u32 s{SRD_X}, s{SRD_X}, s{S_T0}
    s_addc_u32 s{SRD_X+1}, s{SRD_X+1}, 0
    """)

def setup_w(e):
    e(f"""
    s_load_dwordx2 s[{SRD_D}:{SRD_D+1}], s[0:1], 24
    s_load_dwordx2 s[{SRD_O}:{SRD_O+1}], s[0:1], 32
    s_load_dwordx2 s[{SRD_B}:{SRD_B+1}], s[0:1], 40
    s_load_dwordx2 s[{SRD_H}:{SRD_H+1}], s[0:1], 48
    s_cmp_lt_u32 s{S_WAVE}, 2
    s_cselect_b32 s{SRD_G}, s{SRD_G}, s{SRD_U}
    s_cselect_b32 s{SRD_G+1}, s{SRD_G+1}, s{SRD_U+1}
    s_and_b32 s{S_T2}, s{S_WAVE}, 1
    s_mul_i32 s{S_T0}, s{S_T2}, {16*3072}
    s_mul_i32 s{S_T1}, s{S_F}, 192
    s_add_u32 s{S_T1}, s{S_T1}, s{S_T0}
    s_add_u32 s{SRD_G}, s{SRD_G}, s{S_T1}
    s_addc_u32 s{SRD_G+1}, s{SRD_G+1}, 0
    s_sub_u32 s{SRD_G+2}, {W_BYTES}, s{S_T1}
    s_mov_b32 s{SRD_G+3}, 0x262144
    s_mul_i32 s{S_SW}, s{S_SX}, 1536
    s_add_u32 s{S_SW2}, s{S_SW}, {32*3072}
    s_lshr_b32 s{S_T1}, s{S_WAVE}, 1
    s_lshl2_add_u32 s{S_MG}, s{S_T1}, s{S_T2}
    s_mul_i32 s{S_MG}, s{S_MG}, 3072
    s_movk_i32 s{S_T0}, 2880
    v_lshlrev_b32 v{V_L16}, 4, v0
    v_mul_u32_u24 v2, 5462, v0
    """)
    for j in range(3):
        if j: e(f"v_add_u32 v2, {64*5462}, v2")
        e(f"""
        v_lshrrev_b32 v3, 16, v2
        v_lshrrev_b32 v4, 14, v2
        v_and_b32 v4, 32, v4
        v_xor_b32 v4, v4, v{V_L16}
        v_mad_u32_u24 v{V_DG+j}, v3, s{S_T0}, v4
        """)
        if O.emu:
            e(f"""
            v_add_u32 v4, {1024*j}, v{V_DG+j}
            v_and_b32 v4, 127, v4
            v_mul_u32_u24 v3, 3072, v3
            v_add_u32 v4, v4, v3
            v_subrev_u32 v{37+j}, {1024*j}, v4
            s_and_b32 s{SRD_G}, s{SRD_G}, 0xffffff80
            """)

def stage_ops(st):
    b = (st % 3) * SLOT
    ops = []
    for j in range(4):
        ops.append(Op(f"buffer_load_dwordx4 v{V_DX+j}, {srd(SRD_X)}, s{S_SX} offen offset:{1024*j} lds", ("s", st),
                      [f"s_add_u32 m0, s{S_MX}, {b}"] if j == 0 else []))
    for g in range(2):
        for j in range(3):
            ops.append(Op(f"buffer_load_dwordx4 v{V_DG+j}, {srd(SRD_G)}, s{(S_SW, S_SW2)[g]} offen offset:{1024*j} lds", ("s", st) if g or st else ("s0a",),
                          [f"s_add_u32 m0, s{S_MG}, {b + 16384 + 6144*g}"] if j == 0 else []))
    return ops

def adv_src(nxt):
    if nxt <= O.lock:
        return [f"s_mov_b32 s{S_SX}, s{S_ROT}" if nxt == O.lock else f"s_add_u32 s{S_SX}, s{S_SX}, 128", "s_nop 0", "s_nop 0", f"s_mul_i32 s{S_SW}, s{S_SX}, 1536"]
    return lines(f"""
    s_add_u32 s{S_SX}, s{S_SX}, 128
    s_cmpk_eq_u32 s{S_SX}, {128 * (10 - O.lock)}
    s_cselect_b32 s{S_SX}, 0, s{S_SX}
    s_mul_i32 s{S_SW}, s{S_SX}, 1536
    s_add_u32 s{S_SW2}, s{S_SW}, {32*3072}
    """)

def setup_reads(e):
    e(f"""
    v_and_b32 v2, 15, v0
    v_lshlrev_b32 v{V_DBG}, 2, v2
    s_lshr_b32 s{S_T0}, s{S_WAVE}, 1
    s_lshl_b32 s{S_T0}, s{S_T0}, 13
    v_lshlrev_b32 v3, 7, v2
    v_add_u32 v3, s{S_T0}, v3
    v_bfe_u32 v4, v0, 1, 3
    v_lshrrev_b32 v1, 4, v0
    v_xor_b32 v4, v4, v1
    v_lshl_add_u32 v{V_RX[0]}, v4, 4, v3
    v_xor_b32 v{V_RX[0]+1}, 64, v{V_RX[0]}
    v_bfe_u32 v4, v0, 2, 2
    v_lshl_add_u32 v3, v1, 3, v4
    v_mul_u32_u24 v3, 192, v3
    v_and_b32 v4, 3, v0
    v_lshl_add_u32 v3, v4, 3, v3
    v_add_u32 v3, 16384, v3
    v_and_b32 v2, 1, v1
    s_and_b32 s{S_T0}, s{S_WAVE}, 1
    s_mul_i32 s{S_T0}, s{S_T0}, 3
    """)
    for a in range(3):
        e(f"""
        s_add_u32 s{S_T1}, s{S_T0}, {a}
        v_xor_b32 v4, s{S_T1}, v2
        v_lshl_add_u32 v{V_RW[0]+a}, v4, 5, v3
        """)
    for i in range(5): e(f"v_add_u32 v{V_RX[1]+i}, {2*SLOT}, v{V_RX[0]+i}")

def rpmask_code():
    if O.rpmask == 0xffff: return ""
    return f"""s_bitcmp1_b32 {O.rpmask}, s{S_F}
    s_cselect_b32 s{S_T0}, 0, s{SRD_D+2}
    v_add_u32 v{V_RD}, s{S_T0}, v{V_RD}
    v_add_u32 v{V_RD+1}, s{S_T0}, v{V_RD+1}"""

def setup_repack(e):
    P, T = S_T3, S_T1
    e(f"""
    s_mul_i32 s{S_T0}, s2, 13108
    s_lshr_b32 s{P}, s{S_T0}, 16
    s_mul_i32 s{T}, s{P}, 5
    s_sub_u32 s{T}, s2, s{T}
    s_mov_b32 s{SRD_D+2}, {W_BYTES}
    s_mov_b32 s{SRD_D+3}, 0x262144
    v_lshrrev_b32 v2, 4, v0
    v_bfe_u32 v3, v0, 1, 3
    v_xor_b32 v3, v3, v2
    s_and_b32 s{S_T0}, s{S_WAVE}, 1
    s_lshl_b32 s{S_T0}, s{S_T0}, 2
    v_xor_b32 v3, s{S_T0}, v3
    v_and_b32 v4, 1, v0
    v_lshlrev_b32 v4, 4, v4
    v_mul_u32_u24 v2, 1280, v2
    v_add_u32 v2, v2, v4
    v_lshl_add_u32 v{V_RD}, v3, 5, v2
    s_lshl2_add_u32 s{S_T0}, s{P}, s{S_WAVE}
    s_mul_i32 s{S_T0}, s{S_T0}, {8*1280}
    s_lshl_b32 s{S_T2}, s{T}, 8
    s_add_u32 s{S_T0}, s{S_T0}, s{S_T2}
    v_add_u32 v{V_RD}, s{S_T0}, v{V_RD}
    v_add_u32 v{V_RD+1}, {4*1280-1024}, v{V_RD}
    s_bfe_u32 s{S_GRP}, s2, 0x10005
    {rpmask_code()}
    s_lshl_b32 s{S_MR}, s{S_WAVE}, 11
    s_add_u32 s{S_MR}, s{S_MR}, {RPB}
    s_lshl_b32 s{T}, s{T}, 3
    s_mul_i32 s{S_T0}, s{P}, 5462
    s_lshr_b32 s{S_T0}, s{S_T0}, 16
    s_add_u32 s{S_T0}, s{S_T0}, s{T}
    s_lshl_b32 s{S_T0}, s{S_T0}, 8
    s_add_u32 s{S_T0}, s{S_T0}, {CNT_OFF + 1024}
    s_cmp_eq_u32 s{S_WAVE}, 0
    s_cselect_b32 s{S_T0}, s{S_T0}, s{SRD_H+2}
    s_cmp_lt_u32 s2, 240
    s_cselect_b32 s{S_T0}, s{S_T0}, s{SRD_H+2}
    v_lshl_add_u32 v{V_SG}, v0, 25, s{S_T0}
    s_lshl_b32 s{S_T2}, s{S_WAVE}, 1
    s_add_u32 s{T}, s{T}, s{S_T2}
    s_mul_i32 s{P}, s{P}, 5
    """)
    for u, dst in ((0, S_RP0), (1, S_RP1)):
        e(f"""
        s_add_u32 s{S_T0}, s{T}, {u}
        s_mul_i32 s{dst}, s{S_T0}, 13108
        s_lshr_b32 s{dst}, s{dst}, 16
        s_mul_i32 s{dst}, s{dst}, 235
        s_add_u32 s{dst}, s{dst}, s{S_T0}
        s_add_u32 s{dst}, s{dst}, s{P}
        s_lshl_b32 s{dst}, s{dst}, 10
        s_add_u32 s{dst}, s{dst}, {WP_OFF}
        s_cmp_lt_u32 s2, 240
        s_cselect_b32 s{dst}, s{dst}, s{SRD_H+2}
        """)
    e(f"""
    v_bfe_u32 v2, v0, 4, 1
    v_bfe_u32 v3, v0, 2, 2
    v_lshl_add_u32 v2, v2, 2, v3
    v_lshrrev_b32 v4, 4, v0
    v_lshl_add_u32 v3, v4, 3, v3
    v_lshlrev_b32 v3, 8, v3
    v_and_b32 v4, 3, v0
    v_lshl_add_u32 v3, v4, 3, v3
    v_add_u32 v3, {RPB}, v3
    v_xor_b32 v2, s{S_T2}, v2
    v_lshl_add_u32 v{V_RR0}, v2, 5, v3
    v_xor_b32 v{V_RR0+1}, 32, v{V_RR0}
    """)

def tile2():
    if O.map2 == 48:
        return f"""s_and_b32 s{S_T0}, s2, 7
    s_lshr_b32 s{S_T1}, s2, 6
    s_lshl2_add_u32 s{S_R}, s{S_T0}, s{S_T1}
    s_bfe_u32 s{S_C}, s2, 0x30003"""
    if O.map2 == 162:
        return f"""s_and_b32 s{S_T0}, s2, 4
    s_lshr_b32 s{S_T1}, s2, 4
    s_lshl2_add_u32 s{S_R}, s{S_T0}, s{S_T1}
    s_and_b32 s{S_T0}, s2, 3
    s_bfe_u32 s{S_C}, s2, 0x10003
    s_lshl1_add_u32 s{S_C}, s{S_T0}, s{S_C}"""
    return f"""s_and_b32 s{S_T0}, s2, 6
    s_lshr_b32 s{S_T1}, s2, 5
    s_lshl2_add_u32 s{S_R}, s{S_T0}, s{S_T1}
    s_and_b32 s{S_T0}, s2, 1
    s_bfe_u32 s{S_C}, s2, 0x20003
    s_lshl2_add_u32 s{S_C}, s{S_T0}, s{S_C}"""

def setup_p2(e):
    e(f"""
    {tile2()}
    s_mul_i32 s{S_LW}, s{S_WAVE}, 10240
    s_lshl2_add_u32 s{S_T0}, s{S_C}, s{S_WAVE}
    s_mul_i32 s{S_T0}, s{S_T0}, {12*5120}
    s_add_u32 s{S_WB}, s{S_T0}, {WP_OFF}
    v_add_u32 v{V_L16B}, 4096, v{V_L16}
    v_and_b32 v2, 1, v0
    s_mul_i32 s{S_T0}, s{S_C}, 5
    v_lshl_add_u32 v2, v2, 2, s{S_T0}
    v_and_b32 v2, 0x38, v2
    s_add_u32 s{S_T0}, s{S_WAVE}, {4 + (CNT_OFF >> 8)}
    v_add_lshl_u32 v{V_CHA}, v2, s{S_T0}, 8
    s_mov_b32 s{SRD_O+2}, {X_BYTES}
    s_mov_b32 s{SRD_O+3}, 0x262144
    s_lshl2_add_u32 s{S_T0}, s{S_R}, s{S_WAVE}
    s_mul_i32 s{S_T1}, s{S_T0}, 49152
    s_mul_i32 s{S_T2}, s{S_R}, 26
    s_lshr_b32 s{S_T2}, s{S_T2}, 8
    s_lshl_b32 s{S_T2}, s{S_T2}, 17
    s_add_u32 s{S_T1}, s{S_T1}, s{S_T2}
    v_add_u32 v2, s{S_T1}, v{V_L16}
    s_mul_i32 s{S_T0}, s{S_T0}, {16*1280}
    s_mul_i32 s{S_T1}, s{S_C}, 160
    s_add_u32 s{S_OO}, s{S_T0}, s{S_T1}
    """)
    for j in range(4):
        e(f"""
        s_add_u32 s{S_T0}, s{S_WAVE}, {j+1}
        s_and_b32 s{S_T0}, s{S_T0}, 3
        s_lshl_b32 s{S_T0}, s{S_T0}, 10
        v_add_u32 v{V2_HL+j}, s{S_T0}, v2
        """)
    e(f"""
    s_lshr_b32 s{S_T1}, s{S_F}, 2
    s_lshl3_add_u32 s{S_T0}, s{S_M}, s{S_T1}
    s_lshl_b32 s{S_T0}, s{S_T0}, 8
    s_add_u32 s{S_T0}, s{S_T0}, {CNT_OFF}
    s_cmp_eq_u32 s{S_WAVE}, 0
    s_cselect_b32 s{S_T0}, s{S_T0}, s{SRD_H+2}
    v_lshl_add_u32 v{V_SH}, v0, 25, s{S_T0}
    s_lshr_b32 s{S_T0}, s{S_R}, 1
    s_lshl3_add_u32 s{S_T0}, s{S_T0}, s{S_WAVE}
    s_lshl_b32 s{S_T0}, s{S_T0}, 8
    s_add_u32 s{S_CP}, s{S_T0}, {CNT_OFF}
    v_bfe_u32 v2, v0, 4, 1
    v_lshlrev_b32 v2, 10, v2
    v_lshrrev_b32 v3, 5, v0
    v_lshl_add_u32 v2, v3, 8, v2
    v_and_b32 v3, 15, v0
    v_lshl_add_u32 v{V_HOFF}, v3, 4, v2
    s_lshr_b32 s{S_T0}, s{S_WAVE}, 1
    s_lshl1_add_u32 s{S_T0}, s{S_M}, s{S_T0}
    s_mul_i32 s{S_T2}, s{S_T0}, 26
    s_lshr_b32 s{S_T2}, s{S_T2}, 8
    s_lshl_b32 s{S_T2}, s{S_T2}, 17
    s_mul_i32 s{S_T0}, s{S_T0}, 196608
    s_add_u32 s{S_T0}, s{S_T0}, s{S_T2}
    s_and_b32 s{S_T1}, s{S_WAVE}, 1
    s_lshl1_add_u32 s{S_T1}, s{S_F}, s{S_T1}
    s_mul_i32 s{S_T1}, s{S_T1}, 3
    """)
    for a in range(3):
        e(f"""
        s_add_u32 s{S_T2}, s{S_T1}, {a}
        s_and_b32 s{S_HST+a}, s{S_T2}, 1
        s_mul_i32 s{S_HST+a}, s{S_HST+a}, {512 - 2048}
        s_lshl_b32 s{S_T2}, s{S_T2}, 11
        s_add_u32 s{S_HST+a}, s{S_HST+a}, s{S_T2}
        s_add_u32 s{S_HST+a}, s{S_HST+a}, s{S_T0}
        """)
    for i in range(12): e(f"s_mov_b32 s{S_P+i}, {4096*i}")

def slot_addr(st): return (1, 0) if st % 3 == 2 else (0, (st % 3) * SLOT)
def regA(st, t, ks): return V_A + ((6*st + t) & 3)*8 + ks*4
def regB(st, ks, j): return V_B + (st & 1)*32 + ks*16 + j*4
def rdB(st, ks, j):
    k, off = slot_addr(st)
    return f"ds_read_b128 {vr(regB(st, ks, j), 4)}, v{V_RX[k]+ks} offset:{off + j*2048}"
def rdA(st, ks, t):
    a, gu = t >> 1, t & 1
    k, off = slot_addr(st)
    return [f"ds_read_b64_tr_b16 {vr(regA(st, t, ks) + half*2, 2)}, v{V_RW[k]+a} offset:{off + gu*12288 + (32*ks + 4*half)*192}" for half in range(2)]
def acc1(t, j): return V_ACC1 + (t*4 + j)*4
def mf1(st, ks, t, j, first=False):
    acc = vr(acc1(t, j), 4)
    return f"v_mfma_f32_16x16x32_bf16 {acc}, {vr(regA(st, t, ks), 4)}, {vr(regB(st, ks, j), 4)}, {'0' if first else acc}"
def stage_order():
    L = []
    for t in range(6):
        for n, j in enumerate(jord(t)):
            L += [(t, j, ks) for ks in ((0, 1) if n % 2 == 0 else (1, 0))]
    return L
def stage_mf(st):
    seen, out = set(), []
    for t, j, ks in stage_order():
        out.append(mf1(st, ks, t, j, first=(st == 0 and (t, j) not in seen))); seen.add((t, j))
    return out

def jord(t): return range(3, -1, -1) if O.snake and t & 1 else range(4)
DMA_GAPS = [2, 7, 12, 17, 22, 26, 31, 35, 39, 43]

def body(e, vq, st, ops, fill, need, gaps):
    NR = O.nrest
    assert NR == 10
    mf = stage_mf(st - 1)[48-NR:] + stage_mf(st)[:48-NR]
    rd = [rdB(st, 0, 0)] + rdA(st, 0, 0) + [rdB(st, 1, 0)] + rdA(st, 1, 0)
    rd += [rdB(st, 1, 1), rdB(st, 0, 1), rdB(st, 0, 2), rdB(st, 1, 2), rdB(st, 1, 3), rdB(st, 0, 3)]
    for t in range(1, 6): rd += rdA(st, 0, t) + rdA(st, 1, t)
    rgap = list(range(-1, 23)) + [24, 25, 26, 27] + [28, 29, 30, 31]
    last = {10: 5, 12: 7, 14: 9, 16: 11, 18: 13, 19: 15, 26: 19, 34: 27}
    at = dict(zip(gaps, ops))
    p0 = NR if st == 0 else 0
    nrd = p0 + 1
    e(rd[:nrd])
    for g in gaps:
        if g < p0 and g in at: emit(e, vq, at[g])
    for p in range(p0, 48):
        if p in last: e(f"s_waitcnt lgkmcnt({min(15, nrd - 1 - last[p])})")
        e(mf[p])
        while nrd < 32 and rgap[nrd] <= p: e(rd[nrd]); nrd += 1
        if p in at: vq.issue(at[p].ins, at[p].tag)
        if p + 1 in at: e(at[p + 1].pre)
        for x in fill.get(p, []): emit(e, vq, x)
    vq.wait(need, "lgkmcnt(0)")
    if not O.nobar: e("s_barrier")

def place(fill, L, p0):
    L = list(L)
    for p in range(p0, 48):
        if p in (44, 45) or p + 1 in DMA_GAPS and DMA_GAPS.index(p + 1) in (0, 4, 7): continue
        room = 3 - (1 if p < 31 else 0) - (1 if p in DMA_GAPS else 0) - len(fill.get(p, []))
        nv, out = 0, []
        while L and room > 0:
            if L[0].startswith("v_"):
                if nv: break
                nv = 1
            n = 1
            if L[0].startswith("s_cmp"):
                while n < len(L) and L[n].startswith("s_cselect"): n += 1
            out += L[:n]; del L[:n]; room -= n
        if out: fill.setdefault(p, []); fill[p] = fill[p] + out
    assert not L, len(L)

def spin(e, tail, name, cmp, reload):
    e(f"{cmp}\ns_cbranch_vccnz L_{name}\nL_{name}_ok:")
    tail += lines(f"""
    L_{name}:
    s_mov_b32 s{S_SPIN}, 0
    L_{name}_1:
    {reload}
    s_add_u32 s{S_SPIN}, s{S_SPIN}, 1
    s_cmp_gt_u32 s{S_SPIN}, 262144
    s_cbranch_scc1 L_{name}_ok
    s_waitcnt vmcnt(0)
    {cmp}
    s_cbranch_vccnz L_{name}_1
    s_branch L_{name}_ok
    """)

def wd_ops(i):
    return [Op(f"buffer_load_dwordx4 {ar(20*i + 4*t, 4)}, v{V_L16 if t < 4 else V_L16B}, {srd(SRD_H)}, s{S_DS} offen offset:{1024*(t&3)} sc1",
               ("w", i), [f"s_add_u32 s{S_DS}, s{S_WB}, {5120*i}"] if t == 0 else []) for t in range(5)]
def h_loads(i):
    return [f"buffer_load_dwordx4 {vr(V2_H + (i%6)*16 + j*4, 4)}, v{V2_HL+j}, {srd(SRD_H)}, s{S_P+i} offen sc1" for j in range(4)]

def out_addr(e, V_OA, V_OB):
    e(f"""
    v_and_b32 v{V_OB}, 15, v0
    v_mul_u32_u24 v{V_OB}, 1280, v{V_OB}
    v_bfe_u32 v{V_OA}, v0, 4, 1
    v_lshl_add_u32 v{V_OA}, v{V_OA}, 5, v{V_OB}
    v_lshrrev_b32 v16, 5, v0
    v_lshl_add_u32 v{V_OA}, v16, 4, v{V_OA}
    v_lshrrev_b32 v16, 4, v0
    v_lshl_add_u32 v{V_OB}, v16, 3, v{V_OB}
    """)

def phase2_ring(e, vq):
    NB = 16
    ACC, IN = (160, 180), 200
    V_W, V_R, V_OA, V_OB = 2, 3, 14, 15
    def hload(n): return f"buffer_load_dwordx4 {vr(V2_H + (n % NB)*4, 4)}, v{V2_HL + n // 12}, {srd(SRD_H)}, s{S_P + n % 12} offen sc1"
    for n in range(O.hn): vq.issue(hload(n), ("h", n))
    e(f"""
    s_lshl_b32 s{S_T0}, s{S_WAVE}, 14
    v_lshl_add_u32 v{V_W}, v0, {dict([(128, 4), (64, 3), (32, 2)])[O.wr]}, s{S_T0}
    s_add_u32 s{S_T0}, s{S_T0}, 16384
    s_and_b32 s{S_T0}, s{S_T0}, 0xffff
    v_lshl_add_u32 v{V_R}, v0, {dict([(128, 4), (64, 3), (32, 2)])[O.wr]}, s{S_T0}
    """)
    out_addr(e, V_OA, V_OB)
    def fin(t):
        b = ACC[1] + 4*t
        return [f"v_add_f32 v{b+i}, v{b+i}, v{IN+4*t+i}" for i in range(4)] + \
               [f"v_cvt_pk_bf16_f32 v{144+2*t}, v{b}, v{b+1}", f"v_cvt_pk_bf16_f32 v{145+2*t}, v{b+2}, v{b+3}"]
    def st4(r, off):
        return [f"v_permlane16_swap_b32 v{r}, v{r+2}", f"v_permlane16_swap_b32 v{r+1}, v{r+3}",
                f"buffer_store_dwordx4 {vr(r,4)}, v{V_OA}, {srd(SRD_O)}, s{S_OO} offen offset:{off} {O.ostore}"]
    for r in range(4):
        fill = {}
        if r >= 1:
            P = ACC[(r - 1) & 1]
            if r >= 2:
                fill[3] = ["s_waitcnt lgkmcnt(0)"]
                for i in range(20): fill[4 + i] = [f"v_add_f32 v{P+i}, v{P+i}, v{IN+i}"]
            w0 = O.rw0 if r >= 2 else 8
            rbar = O.rbar
            if r == 3 and O.t3: w0, rbar = 8, 31
            nw = O.wr // 32
            reg = lambda a: vr(a, nw) if nw > 1 else f"v{a}"
            for i in range(20 // nw):
                fill.setdefault(w0 + O.wstep*i, []).append(f"ds_write_b{O.wr} v{V_W}, {reg(P + nw*i)} offset:{(r-1)*5120 + i*256*nw}")
            assert w0 + O.wstep * (20 // nw - 1) < rbar
            fill[rbar] = ["s_waitcnt lgkmcnt(0)", "s_barrier"]
            for i in range(20 // nw):
                fill.setdefault(min(59, rbar + 1 + i // (2 if nw == 1 else 1)), []).append(f"ds_read_b{O.wr} {reg(IN + nw*i)}, v{V_R} offset:{(r-1)*5120 + i*256*nw}")
        Lc = int(O.lch.split("/")[r])
        if r == 3 and O.t3:
            P3 = ACC[1]
            L = ["s_waitcnt lgkmcnt(0)"] + fin(0) + fin(1) + fin(2)[:2] + st4(144, 0) + fin(2)[2:]
            g0 = 60 - 5 * Lc + Lc + 6
            early = {}
            for g in range(g0, 60):
                done_t = (g - (60 - 5 * Lc) - 5) // Lc
                take_n = 0
                while L and take_n < 2:
                    m = re.search(r"v_add_f32 v(\d+)", L[0])
                    if m and (int(m.group(1)) - P3) // 4 >= done_t: break
                    early.setdefault(g, []).append(L.pop(0)); take_n += 1
            for g, v in early.items(): fill.setdefault(g, []).extend(v)
            left = L
        k = 0
        for g in range(0, 12, Lc):
            n0 = 12 * r + g
            vq.wait({("h", n0 + Lc - 1), ("w", g + Lc - 1)})
            if (O.fine and g == 0) or n0 == 0: stamp(e)
            for t in range(5):
                for i in range(Lc):
                    s_ = g + (i if t % 2 == 0 else Lc - 1 - i)
                    acc = vr(ACC[r & 1] + 4*t, 4)
                    e(f"v_mfma_f32_16x16x32_bf16 {acc}, {ar(20*s_ + 4*t, 4)}, {vr(V2_H + ((12*r + s_) % NB)*4, 4)}, {acc if g or i else '0'}")
                    n = 12 * r + k // 5
                    if k % 5 == 0 and n + O.hn < 48: vq.issue(hload(n + O.hn), ("h", n + O.hn))
                    e(fill.get(k, []))
                    k += 1
    P = ACC[1]
    if O.t3:
        stamp(e)
        e((["s_nop 7"] if left and left[0].startswith("s_waitcnt") else []) + left + fin(3) + (["s_nop 1"] if len(left) < 2 else []) + fin(4)[:2] + st4(148, 64) + fin(4)[2:])
        e(f"buffer_store_dwordx2 {vr(152,2)}, v{V_OB}, {srd(SRD_O)}, s{S_OO} offen offset:128 {O.ostore}")
        return
    stamp(e)
    e("s_waitcnt lgkmcnt(0)\ns_nop 2")
    for t in range(5):
        b = P + 4*t
        for h in range(2): e(f"v_pk_add_f32 {vr(b+2*h,2)}, {vr(b+2*h,2)}, {vr(IN+4*t+2*h,2)}")
        e(f"v_cvt_pk_bf16_f32 v{144+2*t}, v{b}, v{b+1}")
        e(f"v_cvt_pk_bf16_f32 v{145+2*t}, v{b+2}, v{b+3}")
        if t in (1, 3):
            r = 144 + 2 * (t - 1)
            e(f"s_nop 1\nv_permlane16_swap_b32 v{r}, v{r+2}\nv_permlane16_swap_b32 v{r+1}, v{r+3}")
            e(f"buffer_store_dwordx4 {vr(r,4)}, v{V_OA}, {srd(SRD_O)}, s{S_OO} offen offset:{32*(t-1)} {O.ostore}")
        if t == 4:
            e(f"buffer_store_dwordx2 {vr(152,2)}, v{V_OB}, {srd(SRD_O)}, s{S_OO} offen offset:128 {O.ostore}")

_jn = [0]
def jitter(e, bit, mul, per_wave=False):
    if not (O.jit >> bit) & 1: return
    _jn[0] += 1; n = _jn[0]
    e(f"""
    s_memrealtime s[88:89]
    s_waitcnt lgkmcnt(0)
    s_lshr_b32 s88, s88, 12
    s_add_u32 s88, s88, s2
    {f"s_add_u32 s88, s88, s{S_WAVE}" if per_wave else ""}
    s_mul_i32 s88, s88, {mul}
    s_bfe_u32 s88, s88, 0x50008
    L_jit{n}:
    s_cmp_eq_u32 s88, 0
    s_cbranch_scc1 L_jit{n}e
    s_sleep 8
    s_sub_u32 s88, s88, 1
    s_branch L_jit{n}
    L_jit{n}e:
    """)

def kernel(e):
    tail = []
    vq = VQ(e)
    e("s_cmp_ge_u32 s2, 256\ns_cbranch_scc1 L_done")
    stamp_init(e)
    jitter(e, 0, 40503)
    setup_x(e)
    if O.pro: stamp(e)
    ops = stage_ops(0)
    for op in ops[:4]: vq.issue(op.ins, op.tag)
    setup_w(e)
    for op in ops[4:]: emit(e, vq, op)
    if O.halft == 2:
        stamp(e)
        for n in (9, 6, 3, 0): e(f"s_waitcnt vmcnt({n})"); stamp(e)
    if O.halft == 1:
        vq.wait({("s0a",)}); e("s_barrier"); stamp(e)
        vq.wait({("s", 0)}); e("s_barrier"); stamp(e)
    if O.pro: stamp(e)
    e(f"""
    s_mov_b32 s{SRD_H+2}, {WS_BYTES}
    s_mov_b32 s{SRD_H+3}, 0x262144
    s_mov_b32 s{SRD_B+2}, 256
    s_mov_b32 s{SRD_B+3}, 0x262144
    s_lshl_b32 s{S_T0}, s{S_F if O.z240 else S_M}, 11
    s_add_u32 s{S_T0}, s{S_T0}, {CNT_OFF}
    s_lshl_b32 s{S_T1}, s{S_F if O.z240 else S_M}, 2
    {f"s_sub_u32 s{S_T2}, 15, s{S_M}" if O.z240 else f"s_mov_b32 s{S_T2}, s{S_F}"}
    s_or_b32 s{S_T2}, s{S_T2}, s{S_WAVE}
    s_cmp_eq_u32 s{S_T2}, 0
    s_cselect_b32 s{S_T0}, s{S_T0}, s{SRD_H+2}
    s_cselect_b32 s{S_T1}, s{S_T1}, s{SRD_B+2}
    v_lshrrev_b32 v2, 3, v0
    v_lshlrev_b32 v2, 25, v2
    v_and_b32 v3, 7, v0
    v_lshl_add_u32 v2, v3, 8, v2
    v_lshl_add_u32 v{V_FL}, v0, 8, s{S_T1}
    v_mov_b32 v3, 0
    v_mov_b32 v{V_ONE}, 1
    v_mov_b32 v{V_CHK}, 1
    s_waitcnt lgkmcnt(0)
    """)
    vq.issue(masked(f"buffer_store_dword v3, v2, {srd(SRD_H)}, s{S_T0} offen sc1", 0xff), "zero")
    if O.tlb & 1:
        e(f"""
        s_mov_b32 s{SRD_D+2}, {W_BYTES}
        s_mov_b32 s{SRD_D+3}, 0x262144
        v_min_u32 v2, 4, v0
        v_lshlrev_b32 v2, 21, v2
        v_add_u32 v2, {(2 << 20) - 128}, v2
        v_mov_b32 v4, 128
        """)
        vq.issue(masked(f"buffer_load_dword v27, v2, {srd(SRD_H)}, 0 offen", 0x1f), "tl")
        vq.issue(masked(f"buffer_load_dword v28, v4, {srd(SRD_D)}, 0 offen"), "tl")
        vq.issue(masked(f"buffer_load_dword v29, v4, {srd(SRD_B)}, 0 offen"), "tl")
    if O.warm:
        e(f"""
        s_mov_b64 exec, 0
        s_cmp_eq_u32 s{S_WAVE}, 1
        s_cbranch_scc1 L_warm0
        s_cmp_eq_u32 s{S_WAVE}, 2
        s_cbranch_scc1 L_warm1
        L_warm_ret:
        s_mov_b64 exec, -1
        """)
    rp_dma = [Op(f"buffer_load_dwordx4 v{V_RD}, {srd(SRD_D)}, 0 offen {'nt' if O.ntr else ''} lds", "rpl", [f"s_mov_b32 m0, s{S_MR}"]),
              Op(f"buffer_load_dwordx4 v{V_RD+1}, {srd(SRD_D)}, 0 offen offset:1024 {'nt' if O.ntr else ''} lds", "rpl")]
    rp_rest = None
    if O.rpa == -2:
        t = E(); setup_repack(t); L = [x.strip() for x in t.L]
        k = max(i for i, x in enumerate(L) if f"s{S_MR}," in x) + 1
        e(L[:k])
        for op in rp_dma: emit(e, vq, op)
        e(L[k:])
        rp_rest = True
    e(adv_src(1))
    setup_reads(e)
    lateq = {}
    if O.late and O.rpa >= 1:
        t = E(); setup_repack(t); L = [x.strip() for x in t.L]
        k = max(i for i, x in enumerate(L) if f"s{S_MR}," in x) + 1
        lateq[0], lateq[1] = L[:k], L[k:]
        t = E(); setup_p2(t); L = [x.strip() for x in t.L]
        k = len(L) // 2
        while L[k].startswith('s_cselect') or L[k - 1].startswith('s_cmp'): k += 1
        lateq[5], lateq[6] = L[:k], L[k:]
    else:
        if not rp_rest: setup_repack(e)
        setup_p2(e)
    if O.pro: stamp(e)
    sites = O.sites.split("/") if O.sites else []
    if sites:
        e(f"s_bfe_u32 s{S_T0}, s2, 0x20003\ns_mul_i32 s{S_T0}, s{S_T0}, {len(sites)}\ns_lshr_b32 s{S_T0}, s{S_T0}, 2\ns_add_u32 s{S_T1}, s{S_MR}, 8192")
        for k in range(len(sites)):
            e(f"s_cmp_eq_u32 s{S_T0}, {k}\ns_cselect_b32 s{S_SM+k}, s{S_MR}, s{S_T1}\ns_cselect_b32 s{S_SO+k}, 0, s{SRD_D+2}")
    def site_ops(k):
        return [Op(f"buffer_load_dwordx4 v{V_RD}, {srd(SRD_D)}, s{S_SO+k} offen lds", "rpl", [f"s_mov_b32 m0, s{S_SM+k}"]),
                Op(f"buffer_load_dwordx4 v{V_RD+1}, {srd(SRD_D)}, s{S_SO+k} offen offset:1024 lds", "rpl")]
    if O.touch:
        e(f"""
        s_lshr_b32 s{S_T0}, s{S_F}, 2
        s_cmp_eq_u32 s{S_F}, 10
        s_addc_u32 s{S_T0}, s{S_T0}, 0
        s_lshl4_add_u32 s{S_T0}, s{S_T0}, s{S_M}
        s_lshl2_add_u32 s{S_T0}, s{S_T0}, s{S_WAVE}
        s_mul_i32 s{S_T0}, s{S_T0}, {60*128}
        s_bitcmp1_b32 0x511, s{S_F}
        s_cselect_b32 s{S_TO}, s{S_T0}, s{SRD_D+2}
        v_min_u32 v27, 59, v0
        v_lshlrev_b32 v27, 7, v27
        """)
    touch_op = Op(f"buffer_load_dword v28, v27, {srd(SRD_D)}, s{S_TO} offen", "tch")
    if O.pal: e("s_branch L_pg1\n.p2align 12\nL_pg1:")
    for op in stage_ops(1): emit(e, vq, op)
    e(adv_src(2))
    if O.touch == 1: emit(e, vq, touch_op)
    if "P" in sites:
        for op in site_ops(sites.index("P")): emit(e, vq, op)
    if O.rpa == -1:
        for op in rp_dma: emit(e, vq, op)
    stamp(e)
    vq.wait({("s", 0), "zero"} | ({"rpl"} if O.rpa == -2 and O.rlag == 2 else set()))
    e("s_barrier")
    if O.pro: stamp(e)
    if O.oob & 1: e(f"s_mov_b32 s{SRD_X+2}, 0\ns_mov_b32 s{SRD_G+2}, 0\ns_mov_b32 s{SRD_U+2}, 0")
    if O.oob & 2: e(f"s_mov_b32 s{S_WB}, s{SRD_H+2}")
    vq.issue(masked(f"buffer_store_dword v{V_ONE}, v{V_FL}, {srd(SRD_B)}, 0 offen sc1"), "flag")
    if O.touch == 2: emit(e, vq, touch_op)
    rp_rd = [f"ds_read_b64_tr_b16 {vr(V_RT + 4*u + 2*h, 2)}, v{V_RR0+u} offset:{1024*h}" for u in range(2) for h in range(2)]
    rp_st = [Op(f"buffer_store_dwordx4 {vr(V_RT + 4*u, 4)}, v{V_L16}, {srd(SRD_H)}, s{S_RP0+u} offen sc1", "rps") for u in range(2)]
    wd = [op for i in range(12) for op in wd_ops(i)]
    def take(n):
        out = wd[:n]; del wd[:n]; return out
    a = O.rpa
    casc = [int(x) for x in O.casc.split("/")] if O.casc else None
    allops = [op for k in range(2, 10) for op in stage_ops(k)]
    for st in range(9):
        src = adv_src(st + 3)
        fill = {44: src[:2], 45: src[2:4], 46: src[4:]} if st < 7 else {}
        need = {("s", st + 1)}
        ops = stage_ops(st + 2) if st < 8 else take(O.b7)
        cgaps = None
        if casc and st < 8:
            ops, allops = allops[:casc[st]], allops[casc[st]:]
            g0 = O.cg0 if st == a else 2
            cgaps = DMA_GAPS if len(ops) == 10 and g0 == 2 else [g0 + ((43 - g0) * k) // (len(ops) - 1) for k in range(len(ops))]
            fill = {}
            for k, op in enumerate(ops):
                nxt = ops[k + 1] if k + 1 < len(ops) else (allops[0] if allops else None)
                if nxt is not None and nxt.tag != op.tag:
                    src = adv_src(nxt.tag[1])
                    fill[cgaps[k] + 1], fill[cgaps[k] + 2] = src[:3], src[3:]
        if O.nodma and st < 8: ops = []
        def cond(g, L, name):
            t = E(); q = VQ(t)
            t(L) if not any(isinstance(x, Op) for x in L) else [emit(t, q, x) for x in L]
            return [f"s_cmp_eq_u32 s{S_GRP}, {g}", f"s_cbranch_scc0 L_{name}{st}"] + [x.strip() for x in t.L] + [f"L_{name}{st}:"]
        chk = f"buffer_load_dword v{V_CHK}, v{V_DBG}, {srd(SRD_B)}, 0 offen sc1"
        sig = Op(masked(f"buffer_atomic_add v{V_ONE}, v{V_SG}, {srd(SRD_H)}, 0 offen sc1"), "sig")
        if O.norp: pass
        elif O.rpg == 1:
            if O.rpe and st == a - 1:
                fill.setdefault(O.rpe - 1, []).append(rp_dma[0].pre[0])
                fill.setdefault(O.rpe, []).append(Op(rp_dma[0].ins, "rpl"))
                fill.setdefault(O.rpe + 1, []).append(rp_dma[1])
            for k, sname in enumerate(sites):
                if sname == "T" and st == a:
                    for op in site_ops(k): emit(e, vq, op)
                if sname.isdigit() and st == a - 1:
                    g = int(sname)
                    nxt = min(x for x in DMA_GAPS + [99] if x > g)
                    L = site_ops(k)
                    if nxt != 99 and not ops[DMA_GAPS.index(nxt)].pre:
                        j = max(i for i in range(DMA_GAPS.index(nxt)) if ops[i].pre)
                        L.append(ops[j].pre[0])
                    fill.setdefault(g, []).extend(L)
            if st == a and not O.rpe and not sites:
                for op in rp_dma: emit(e, vq, op)
            if st == max(a + O.rlag - 1, 0): need.add("rpl")
            if a + O.rlag < (0 if a == -2 else 1): raise SystemExit("rlag too small")
            if st == a + O.rlag:
                e(rp_rd)
                fill[O.stg] = fill.get(O.stg, []) + [rp_st[0]]; fill[O.stg + 1] = [rp_st[1]]
                if O.t6 and st > 0: fill[0] = [Op(chk, "chk")]
            if st == a + O.rlag + 1:
                if not O.t6 or st == 1: fill[0] = [Op(chk, "chk")]
                need |= {"rps", "chk"}
            if st == a + O.rlag + 2:
                spin(e, tail, "zchk", f"v_cmp_ne_u32 vcc, 1, v{V_CHK}", chk)
                fill[0] = [sig]
        else:
            for g in range(2):
                if st == a + g: e(cond(g, rp_dma, "ca"))
                if st == a + g + 1:
                    e(cond(g, rp_rd, "cb"))
                    fill[O.stg] = cond(g, rp_st, "cc")
                if st == a + g + 3: fill[0] = cond(g, [sig], "cd")
            if st == a + 2:
                if O.chk0: fill[0] = [f"s_cmp_eq_u32 s{S_WAVE}, 0", "s_cbranch_scc0 L_nochk", chk, "L_nochk:"]
                else: fill[0] = [Op(chk, "chk")]; need.add("chk")
            if st == a + 3: spin(e, tail, "zchk", f"v_cmp_ne_u32 vcc, 1, v{V_CHK}", chk)
        if st == 7:
            fill[O.pg] = [Op(f"buffer_load_dword v{V_CHK}, v{V_CHA}, {srd(SRD_H)}, 0 offen sc1", "rpp")]
            if not O.t5: need.add("rpp")
        gaps = cgaps or DMA_GAPS
        if st == 8 and not O.norp:
            t = E() if O.t5 else e
            if O.t5: t(f"s_waitcnt vmcnt({vq.count({'rpp'})})")
            spin(t, tail, "rchk", f"v_cmp_ne_u32 vcc, 12, v{V_CHK}", f"buffer_load_dword v{V_CHK}, v{V_CHA}, {srd(SRD_H)}, 0 offen sc1")
            if not O.t5: gaps = [1 + (46 * k) // len(ops) for k in range(len(ops))]
            if O.t5:
                fill[8] = [x.strip() for x in t.L]
                gaps = [10 + (36 * k) // len(ops) for k in range(len(ops))]
        if st in lateq: place(fill, lateq[st], O.nrest if st == 0 else 1)
        body(e, vq, st, ops, fill, need, gaps)
        if O.fine or st == 8: stamp(e)
        if st in (1, 3, 6): jitter(e, 1, 30011 + 2 * st, True)
    NR = O.nrest
    units = [(a, jp) for a in range(3) for jp in (0, 2)]
    mf = stage_mf(8)[48-NR:]
    for a, jp in units:
        g, u = 2*a, 2*a + 1
        mf += [mf1(9, ks, t, j) for t, j, ks in ((g, jp, 0), (g, jp, 1), (g, jp+1, 1), (g, jp+1, 0), (u, jp+1, 0), (u, jp+1, 1), (u, jp, 1), (u, jp, 0))]
    rd = [rdB(9, 0, 0)] + rdA(9, 0, 0) + [rdB(9, 1, 0)] + rdA(9, 1, 0) + [rdB(9, 1, 1), rdB(9, 0, 1)] + rdA(9, 0, 1) + rdA(9, 1, 1)
    rd += [rdB(9, 0, 2), rdB(9, 1, 2), rdB(9, 1, 3), rdB(9, 0, 3)]
    for t in (2, 3, 4, 5): rd += rdA(9, 0, t) + rdA(9, 1, t)
    rg = [-1, -1, 0, 0, 1, 1, 2, 2, 3, 3, 4, 4, 5, 6, 7, 8] + list(range(10, 18)) + [26, 26, 27, 27, 28, 28, 29, 29]
    rd_at = {p: [r for r, g in zip(rd, rg) if g == p] for p in range(-1, 40)}
    needs = {NR: 7, NR + 4: 11, NR + 8: 15, NR + 16: 23, NR + 32: 31}
    def epi(a, jp, pk=False):
        L = []
        for d in range(2):
            g = acc1(2*a, jp + d)
            L += [f"v_max_f32 v{g+r}, 0, v{g+r}" for r in range(4)]
        for d in range(2):
            g, u = acc1(2*a, jp + d), acc1(2*a + 1, jp + d)
            if pk: L += [f"v_pk_mul_f32 {vr(g+2*h,2)}, {vr(g+2*h,2)}, {vr(u+2*h,2)}" for h in range(2)]
            else: L += [f"v_mul_f32 v{g+r}, v{g+r}, v{u+r}" for r in range(4)]
        u = acc1(2*a + 1, jp)
        for d in range(2):
            g = acc1(2*a, jp + d)
            L += [f"v_cvt_pk_bf16_f32 v{u+2*d+h}, v{g+2*h}, v{g+2*h+1}" for h in range(2)]
        L += ["s_nop 1", f"v_permlane16_swap_b32 v{u}, v{u+2}", f"v_permlane16_swap_b32 v{u+1}, v{u+3}"]
        return L + [Op(f"buffer_store_dwordx4 {vr(u,4)}, v{V_HOFF}, {srd(SRD_H)}, s{S_HST+a} offen offset:{jp*1024} {O.hstore}", "st")]
    if O.wg9: O.b8 = len(O.wg9.split('/'))
    wops = take(O.b8)
    wgaps = [int(x) for x in O.wg9.split('/')] if O.wg9 else [int(O.w0 + k * O.wd) for k in range(len(wops))]
    issued, pend = len(rd_at[-1]), []
    e(rd_at[-1])
    for p in range(len(mf)):
        if p in needs: e(f"s_waitcnt lgkmcnt({min(15, issued - 1 - needs[p])})")
        e(mf[p])
        if p in rd_at: e(rd_at[p]); issued += len(rd_at[p])
        if p in wgaps: emit(e, vq, wops.pop(0))
        q = p - NR - 8
        if q >= 0 and q % 8 == O.elag:
            L = epi(*units[q // 8])
            if O.t2:
                c = L[-8:-4]
                L = L[:-8] + [c[0], c[2], c[1], c[3], "GAP", L[-3], L[-2], L[-1]]
            pend += L
        k = 0
        while pend and k < O.en:
            x = pend.pop(0)
            if x == "GAP":
                if k: break
                continue
            emit(e, vq, x); k += 1
    for x in pend: emit(e, vq, "s_nop 0" if x == "GAP" else x)
    stamp(e)
    e("s_nop 3")
    for x in epi(*units[5], pk=True): emit(e, vq, x)
    stamp(e)
    for x in take(O.pre): emit(e, vq, x)
    stamp(e)
    jitter(e, 2, 52361, True)
    vq.wait({"st"})
    e("s_barrier")
    jitter(e, 2, 12347, True)
    stamp(e)
    vq.issue(masked(f"buffer_atomic_add v{V_ONE}, v{V_SH}, {srd(SRD_H)}, 0 offen sc1"), "sigh")
    e("v_mov_b32 v2, 0")
    poll = f"buffer_load_dword v3, v2, {srd(SRD_H)}, s{S_CP} offen sc1"
    for x in take(max(0, len(wd) - O.pollat)): emit(e, vq, x)
    vq.issue(poll, "poll")
    for x in take(len(wd)): emit(e, vq, x)
    stamp(e)
    if O.pal: e("s_branch L_pg2\n.p2align 12\nL_pg2:")
    vq.wait({"poll"})
    spin(e, tail, "poll", "v_cmp_ne_u32 vcc, 4, v3", poll)
    stamp(e)
    if O.ring:
        phase2_ring(e, vq)
        stamp(e)
        stamp_flush(e, 16 << 20)
        e("L_done:\ns_endpgm")
        e(tail)
        e("L_end:")
        return
    for i in range(O.hd):
        for x in h_loads(i): vq.issue(x, ("h", i))
    V_RW0, V_RR, V_OA, V_OB = 2, 3, 14, 15
    e(f"v_add_u32 v{V_RW0}, s{S_LW}, v{V_L16}\nv_add_u32 v1, {2*SLOT}, v{V_RW0}")
    for j in range(3):
        e(f"""
        s_sub_u32 s{S_T0}, s{S_WAVE}, {j+1}
        s_and_b32 s{S_T0}, s{S_T0}, 3
        s_mul_i32 s{S_T0}, s{S_T0}, 10240
        s_add_u32 s{S_T0}, s{S_T0}, {[0, 5120, 2*SLOT][j]}
        v_add_u32 v{V_RR+j}, s{S_T0}, v{V_L16}
        """)
    e(f"""
    v_and_b32 v{V_OB}, 15, v0
    v_mul_u32_u24 v{V_OB}, 1280, v{V_OB}
    v_bfe_u32 v{V_OA}, v0, 4, 1
    v_lshl_add_u32 v{V_OA}, v{V_OA}, 5, v{V_OB}
    v_lshrrev_b32 v16, 5, v0
    v_lshl_add_u32 v{V_OA}, v16, 4, v{V_OA}
    v_lshrrev_b32 v16, 4, v0
    v_lshl_add_u32 v{V_OB}, v16, 3, v{V_OB}
    """)
    def red_write(j, t):
        va, off = (V_RW0, j * 5120) if j < 2 else (1, 0)
        return f"ds_write_b128 v{va}, {vr(V2_ACC + (j*5+t)*4, 4)} offset:{off + t*1024}"
    for s in range(12):
        vq.wait({("h", s), ("w", s)})
        if O.fine or s == 0: stamp(e)
        hl = h_loads(s + O.hd) if s + O.hd < 12 else []
        order = [(t, j) for t in range(5) for j in range(4)] if s < 11 else [(t, j) for j in range(4) for t in range(5)]
        for k, (t, j) in enumerate(order):
            acc = vr(V2_ACC + (j*5 + t)*4, 4)
            e(f"v_mfma_f32_16x16x32_bf16 {acc}, {ar(20*s + 4*t, 4)}, {vr(V2_H + (s%6)*16 + j*4, 4)}, {acc if s else '0'}")
            if k % 5 == 0 and k // 5 < len(hl): vq.issue(hl[k // 5], ("h", s + O.hd))
            if s == 11 and k >= 8: e(red_write((k - 8) // 5, (k - 8) % 5))
    for k in range(20, 23): e(red_write((k - 8) // 5, (k - 8) % 5))
    stamp(e)
    e("s_waitcnt lgkmcnt(0)\ns_barrier")
    stamp(e)
    for t in range(5):
        for j in range(3):
            e(f"ds_read_b128 {vr(64 + (t*3+j)*4, 4)}, v{V_RR+j} offset:{t*1024}")
    OWN = V2_ACC + 60
    for t in range(5):
        b = 64 + t * 12
        e(f"s_waitcnt lgkmcnt({12 - 3*t})")
        for h in range(2):
            e(f"v_pk_add_f32 {vr(b+2*h,2)}, {vr(b+2*h,2)}, {vr(b+4+2*h,2)}")
            e(f"v_pk_add_f32 {vr(OWN+t*4+2*h,2)}, {vr(OWN+t*4+2*h,2)}, {vr(b+8+2*h,2)}")
        for h in range(2):
            e(f"v_pk_add_f32 {vr(b+2*h,2)}, {vr(b+2*h,2)}, {vr(OWN+t*4+2*h,2)}")
        e(f"v_cvt_pk_bf16_f32 v{144+2*t}, v{b}, v{b+1}")
        e(f"v_cvt_pk_bf16_f32 v{145+2*t}, v{b+2}, v{b+3}")
        if t in (1, 3):
            r = 144 + 2 * (t - 1)
            e(f"s_nop 1\nv_permlane16_swap_b32 v{r}, v{r+2}\nv_permlane16_swap_b32 v{r+1}, v{r+3}")
            e(f"buffer_store_dwordx4 {vr(r,4)}, v{V_OA}, {srd(SRD_O)}, s{S_OO} offen offset:{32*(t-1)} {O.ostore}")
        if t == 4:
            e(f"buffer_store_dwordx2 {vr(152,2)}, v{V_OB}, {srd(SRD_O)}, s{S_OO} offen offset:128 {O.ostore}")
    stamp(e)
    stamp_flush(e, 16 << 20)
    e("L_done:\ns_endpgm")
    e(tail)
    e("L_end:")

HEADER = """
"""

def gen():
    e = E()
    e.L += HEADER.strip().split("\n") + [
            f"; @launch grid=(256,1,1) block=(256,1,1) lds={LDS_BYTES}",
            '.amdgcn_target "amdgcn-amd-amdhsa--gfx950"', ".text", f".globl {KNAME}"] + ([".p2align 12"] if O.pal else []) + [".p2align 8",
            f".type {KNAME},@function", f"{KNAME}:"]
    kernel(e)
    e.L += ['.section .rodata,"a"', ".p2align 6", f".amdhsa_kernel {KNAME}",
            "  .amdhsa_next_free_vgpr 496", "  .amdhsa_next_free_sgpr 100", "  .amdhsa_accum_offset 256",
            "  .amdhsa_group_segment_fixed_size 0", "  .amdhsa_float_denorm_mode_32 3", "  .amdhsa_kernarg_size 56", "  .amdhsa_user_sgpr_count 2",
            "  .amdhsa_user_sgpr_kernarg_segment_ptr 1", "  .amdhsa_system_sgpr_workgroup_id_x 1", ".end_amdhsa_kernel"]
    return add_warm_stubs(e.text()) if O.warm else e.text()

def add_warm_stubs(txt):
    import subprocess, re, tempfile, os
    L = txt.split("\n")
    for k in range(2):
        T = list(L)
        for j in range(k, 2): T.insert(T.index("L_done:"), f"L_warm{j}:")
        with tempfile.TemporaryDirectory() as d:
            open(d + "/a.s", "w").write("\n".join(T))
            subprocess.run(["clang", "-x", "assembler", "-target", "amdgcn-amd-amdhsa", "-mcpu=gfx950", "-c", "-g", d + "/a.s", "-o", d + "/a.o"], check=True)
            dis = subprocess.run(["llvm-objdump", "-d", "-l", "--mcpu=gfx950", d + "/a.o"], capture_output=True, text=True).stdout
        line, addr = None, {}
        for l in dis.split("\n"):
            m = re.match(r"; .*a\.s:(\d+)", l)
            if m: line = int(m.group(1)); continue
            m = re.search(r"// ([0-9A-F]{12}):", l)
            if m and line is not None and line not in addr: addr[line] = int(m.group(1), 16)
        p1 = T.index("L_pg1:") + 1 if "L_pg1:" in T else None
        base = addr[p1 + 1] if p1 else 0x1000 - 0x300
        target = base + 0x1000 * (k + 1)
        ln = min(n for n, a in addr.items() if a >= target and n > (p1 or 0))
        i = ln - 1
        while "v_mfma" not in L[i - 1]: i += 1
        L[i:i] = [f"L_warm{k}:", "    s_cbranch_execz L_warm_ret"]
    return "\n".join(L)

if __name__ == "__main__":
    out = sys.argv[1]
    for a in sys.argv[2:]:
        k, _, v = a.partition("=")
        cur = getattr(O, k)
        setattr(O, k, (v == "1") if isinstance(cur, bool) else type(cur)(v))
    open(out, "w").write(gen())
```
